```python
import torch

def _softmax(x, axis=-1):
    return torch.softmax(x, dim=axis)
def _gelu(x):
    return torch.nn.functional.gelu(x, approximate="tanh")
def _silu(x):
    return torch.nn.functional.silu(x)
def _sigmoid(x):
    return torch.sigmoid(x)
def _layernorm(x, axis=-1, eps=1e-5):
    m = x.mean(dim=axis, keepdim=True)
    v = x.var(dim=axis, keepdim=True, unbiased=False)
    return (x - m) / torch.sqrt(v + eps)
def _scatter_add(tgt, idx, src, axis=0):
    return tgt.clone().index_add_(axis, idx, src)
def _segment_sum(src, seg, n):
    out = torch.zeros((n,) + src.shape[1:], dtype=src.dtype)
    return out.index_add_(0, seg, src)
def _pad(x, pw):
    flat = tuple(v for pair in reversed(pw) for v in pair)
    return torch.nn.functional.pad(x, flat)

kernel_name = 'standalone__linear_kernel_rfa__decode'

def setup_inputs():

    _w = (lambda a: (lambda t: t.to(torch.bfloat16) if t.is_floating_point() else t)(torch.as_tensor(a)))
    B, H, Sq, Sk, D, M = 1, 32, 1, 8192, 128, 16
    return {
        "q": _w((lambda *s: torch.randn(*s, dtype=torch.bfloat16) * 0.4)(B, H, Sq, D)),
        "k": _w((lambda *s: torch.randn(*s, dtype=torch.bfloat16) * 1.6)(B, H, Sk, D)),
        "v": _w((lambda *s: torch.randn(*s, dtype=torch.bfloat16) * 1.6)(B, H, Sk, D)),
        "omega": _w((lambda *s: torch.randn(*s, dtype=torch.bfloat16) * 1.6)(M, D)),
    }

def reference(q, k, v, omega):
    d = q.shape[-1]
    m = omega.shape[0]
    scale = float(d) ** -0.25
    qs = q * scale
    ks = k * scale
    q_proj = torch.einsum("bhsd,md->bhsm", qs, omega)
    k_proj = torch.einsum("bhsd,md->bhsm", ks, omega)
    q_sq = 0.5 * torch.einsum("bhsd,bhsd->bhs", qs, qs)[..., None]
    k_sq = 0.5 * torch.einsum("bhsd,bhsd->bhs", ks, ks)[..., None]
    inv_sqrt_m = float(m) ** -0.5
    phi_q = torch.exp(q_proj - q_sq) * inv_sqrt_m + 1e-6
    phi_k = torch.exp(k_proj - k_sq) * inv_sqrt_m + 1e-6
    kv = torch.einsum("bhsm,bhsd->bhmd", phi_k, v)
    z  = torch.einsum("bhsm->bhm", phi_k)
    num = torch.einsum("bhqm,bhmd->bhqd", phi_q, kv)
    den = torch.einsum("bhqm,bhm->bhq", phi_q, z)[..., None] + 1e-6
    return num / den
```

```python
import re

def regs_of(tok):
    tok = tok.strip()
    tok = re.sub(r'^-', '', tok)
    m = re.fullmatch(r'\|?abs\((.*)\)\|?', tok)
    if m: tok = m.group(1)
    tok = tok.strip('|')
    m = re.fullmatch(r'([vsa])(\d+)', tok)
    if m: return {(m.group(1), int(m.group(2)))}
    m = re.fullmatch(r'([vsa])\[(\d+):(\d+)\]', tok)
    if m: return {(m.group(1), i) for i in range(int(m.group(2)), int(m.group(3)) + 1)}
    if tok == 'vcc': return {('s', 'vcc')}
    if tok == 'exec': return {('s', 'exec')}
    if tok == 'm0': return {('s', 'm0')}
    return set()

TRANS = ('v_exp_f32', 'v_log_f32', 'v_rcp_f32', 'v_rsq_f32', 'v_sqrt_f32', 'v_sin_f32', 'v_cos_f32')

class Ins:
    def __init__(self, text):
        self.text = text
        t = text.split(';')[0].strip()
        self.label = t.endswith(':')
        self.op = t.split()[0] if t else ''
        rest = t[len(self.op):].strip()
        ops = [x.strip() for x in re.split(r',(?![^\[]*\])', rest)] if rest else []
        if ops:
            parts = ops[-1].split()
            self.mods = parts[1:]
            ops[-1] = parts[0] if parts else ''
        else:
            self.mods = []
        self.ops = ops
        op = self.op
        self.defs, self.uses = set(), set()
        self.is_mfma = op.startswith('v_mfma')
        self.is_valu = op.startswith('v_') and not self.is_mfma
        self.is_vmem = op.startswith('buffer_') or op.startswith('global_')
        self.is_ds = op.startswith('ds_')
        self.is_salu = op.startswith('s_')
        self.is_dot = op.startswith('v_dot')
        self.is_trans = any(op.startswith(x) for x in TRANS)
        self.is_dpp = '_dpp' in op or any(m.startswith(('row_', 'quad_perm')) for m in self.mods)
        self.is_perml = op.startswith('v_permlane')
        self.is_rl = op.startswith('v_readlane') or op.startswith('v_readfirstlane')
        R = [regs_of(o) for o in ops]
        if self.label or not op: return
        if self.is_vmem:
            store = 'store' in op or ('atomic' in op)
            lds = 'lds' in self.mods or 'load_lds' in op
            if op.startswith('buffer_'):
                if op in ('buffer_wbl2', 'buffer_inv'): return
                if lds:
                    for r in R: self.uses |= r
                elif store:
                    for r in R: self.uses |= r
                    if 'atomic' in op and 'sc0' in self.mods: self.defs |= R[0]
                    self.store_data = R[0]
                else:
                    self.defs |= R[0]
                    for r in R[1:]: self.uses |= r
            else:
                if lds:
                    for r in R: self.uses |= r
                elif 'atomic' in op and 'sc0' in self.mods:
                    self.defs |= R[0]
                    for r in R[1:]: self.uses |= r
                elif store:
                    for r in R: self.uses |= r
                    self.store_data = R[1]
                else:
                    self.defs |= R[0]
                    for r in R[1:]: self.uses |= r
        elif self.is_ds:
            if 'write' in op or 'add' in op:
                for r in R: self.uses |= r
            else:
                self.defs |= R[0]
                for r in R[1:]: self.uses |= r
        elif op.startswith('v_cmp'):
            self.defs |= R[0]
            if op.startswith('v_cmpx'): self.defs |= {('s', 'exec')}
            for r in R[1:]: self.uses |= r
        elif self.is_perml and 'swap' in op:
            self.defs |= R[0] | R[1]; self.uses |= R[0] | R[1]
        elif op.startswith('v_div_scale') or op.startswith('v_add_co') or op.startswith('v_addc_co'):
            self.defs |= R[0] | R[1]
            for r in R[2:]: self.uses |= r
        elif op.startswith('s_cmp') or op.startswith('s_cbranch') or op in ('s_waitcnt', 's_nop', 's_barrier', 's_endpgm', 's_branch', 's_sleep', 's_setprio'):
            for r in R: self.uses |= r
        else:
            if R:
                self.defs |= R[0]
                for r in R[1:]: self.uses |= r
            if op.startswith('v_fmac') or op.startswith('v_dot2c') or op.startswith('v_pk_fmac') or self.is_dpp or op.startswith('v_writelane'):
                self.uses |= R[0]
            if op.startswith('v_cndmask') and len(ops) == 3: self.uses |= {('s', 'vcc')}
            if op.startswith('v_div_fmas'): self.uses |= {('s', 'vcc')}
            if 'saveexec' in op: self.defs |= {('s', 'exec')}
        if self.is_mfma:
            self.srcA, self.srcB, self.srcC = R[1], R[2], R[3]
            if '16x16x32' in op or '16x16x16' in op: self.passes, self.kind = 4, 'xdl'
            elif '32x32x16' in op or '32x32x8' in op: self.passes, self.kind = 8, 'xdl'
            elif '16x16x4_f32' in op: self.passes, self.kind = 8, 'sgemm'
            elif '32x32x2_f32' in op: self.passes, self.kind = 16, 'sgemm'
            elif '4x4x4' in op: self.passes, self.kind = 2, 'xdl'
            else: raise ValueError(op)
    def states(self):
        if self.label or not self.op: return 0
        if self.op == 's_nop': return int(self.ops[0]) + 1
        return 1

def V(s): return {x for x in s if x[0] in 'va'}
def S(s): return {x for x in s if x[0] == 's'}

def need(p, c):
    n = 0
    if p.is_valu:
        vd = V(p.defs); sd = S(p.defs)
        if c.is_mfma and vd & c.uses: n = max(n, 3 if p.is_dot else 2)
        if p.is_dot and (vd & (c.uses | c.defs)) and not c.is_mfma:
            same = (c.op == p.op)
            if same:
                ab = set()
                if c.op.startswith('v_dot2c'):
                    for o in c.ops[1:3]: ab |= regs_of(o)
                else:
                    for o in c.ops[1:3]: ab |= regs_of(o)
                if vd & ab: n = max(n, 3)
            else: n = max(n, 3)
        if p.is_trans and c.is_valu and not c.is_trans and vd & c.uses: n = max(n, 1)
        if p.is_trans and c.is_mfma and vd & c.uses: n = max(n, 2)
        if c.is_dpp and vd & c.uses: n = max(n, 2)
        if c.is_perml and vd & c.uses: n = max(n, 2)
        if c.is_rl and vd & c.uses: n = max(n, 1)
        if sd:
            if c.is_vmem and sd & c.uses: n = max(n, 5)
            if c.is_valu and (sd - {('s','exec')}) & c.uses: n = max(n, 4 if (c.op.startswith('v_div_fmas') or c.is_rl or c.op.startswith('v_writelane')) else 2)
            if c.is_salu and sd & c.uses: n = max(n, 1)
            if ('s', 'exec') in sd:
                if c.is_dpp: n = max(n, 5)
                if c.is_mfma or c.is_rl or c.is_perml: n = max(n, 4)
        if 'sdwa' in p.op and (c.is_valu) and vd & (c.uses | c.defs): n = max(n, 1)
    if p.is_salu and ('s', 'm0') in p.defs and (c.is_vmem and ('lds' in c.mods or 'load_lds' in c.op)): n = max(n, 1)
    if p.is_mfma:
        d = V(p.defs)
        idx = {2: 0, 4: 1, 8: 2, 16: 3}[p.passes]
        if c.is_mfma:
            if d & (c.srcA | c.srcB):
                n = max(n, ([5, 8, 12, 20] if p.kind == 'xdl' else [4, 6, 10, 18])[idx])
            if d & c.srcC:
                exact = (d == c.srcC and p.kind == c.kind and p.passes == c.passes)
                if exact: n = max(n, [2, 0, 0, 0][idx])
                elif p.kind == 'xdl': n = max(n, ([4, 6, 10, 18] if c.kind == 'xdl' else [3, 6, 10, 18])[idx])
                else: n = max(n, ([2, 4, 8, 16][idx] if c.kind == 'sgemm' else 0))
            elif d & V(c.defs):
                n = max(n, ([5, 8, 12, 20] if p.kind == 'xdl' else [4, 6, 10, 18])[idx])
        else:
            if d & (V(c.uses) | V(c.defs)):
                n = max(n, ([5, 8, 12, 20] if p.kind == 'xdl' else [4, 6, 10, 18])[idx])
            if p.kind == 'xdl' and c.is_valu and p.srcC & V(c.defs):
                n = max(n, [1, 3, 7, 15][idx])
    if p.is_vmem and hasattr(p, 'store_data') and ('x4' in p.op or 'x3' in p.op):
        if p.store_data & V(c.defs): n = max(n, 2)
    return n

class Prog:
    def __init__(self):
        self.ins = []
    def __call__(self, text):
        for line in text.split('\n'):
            line = line.strip()
            if line: self.ins.append(Ins(line))
    def comment(self, t):
        i = Ins(''); i.text = '; ' + t; self.ins.append(i)
    def finalize(self):
        out = []
        nops = 0
        for c in self.ins:
            if c.op and not c.label:
                dist = 0; req = 0
                for p in reversed(out):
                    if dist >= 21: break
                    if p.op and not p.label:
                        r = need(p, c) - dist
                        if r > req: req = r
                    dist += p.states()
                while req > 0:
                    k = min(req, 16)
                    out.append(Ins('s_nop %d' % (k - 1))); nops += k
                    req -= k
            out.append(c)
        self.out = out
        self.nops = nops
        return '\n'.join((i.text if (i.label or i.text.startswith(';')) else '    ' + i.text) for i in out)
```

```python
import sys, struct
from asmlib import Prog

def f32(x): return struct.unpack('<I', struct.pack('<f', x))[0]
SCALE = f32(128.0 ** -0.25)
LOG2E = f32(1.4426950408889634)
EPS = f32(1e-6)

HDR = """; RandomFeatureAttention (FAVOR+) decode: B=1 H=32 Sk=8192 D=128 M=16, bf16.
"""

def vr(a, n=1):
    return 'v%d' % a if n == 1 else 'v[%d:%d]' % (a, a + n - 1)
def sr(a, n=1):
    return 's%d' % a if n == 1 else 's[%d:%d]' % (a, a + n - 1)

sMASK, sSC, sL2E, sQ25, sSELLO, sSELHI = 48, 50, 52, 53, 54, 55
sOFF = 40

def consts(p):
    p('s_mov_b32 s%d, 0xffff0000' % sMASK)
    p('s_mov_b32 s%d, 0x%08x' % (sSC, SCALE))
    p('s_mov_b32 s%d, 0x%08x' % (sSC + 1, SCALE))
    p('s_mov_b32 s%d, 0x%08x' % (sL2E, LOG2E))
    p('s_mov_b32 s%d, 0x3e800000' % sQ25)
    p('s_mov_b32 s%d, 0x05040100' % sSELLO)
    p('s_mov_b32 s%d, 0x07060302' % sSELHI)

def scale_tiles(p, tiles, T, SQ):
    pend = []
    for grp in range(4):
        for ti, kb in enumerate(tiles):
            ks = [kb + 4 * grp + i for i in range(4)]
            for i, k in enumerate(ks): p('v_lshlrev_b32 v%d, 16, v%d' % (T + 2 * i, k))
            for i, k in enumerate(ks): p('v_and_b32 v%d, s%d, v%d' % (T + 2 * i + 1, sMASK, k))
            for x in pend: p(x)
            pend = []
            for i, k in enumerate(ks): p('v_pk_mul_f32 %s, %s, %s' % (vr(T + 2 * i, 2), vr(T + 2 * i, 2), sr(sSC, 2)))
            for i, k in enumerate(ks): p('v_cvt_pk_bf16_f32 v%d, v%d, v%d' % (k, T + 2 * i, T + 2 * i + 1))
            for i, k in enumerate(ks):
                if grp == 0 and i == 0: pend.append('v_dot2_f32_bf16 v%d, v%d, v%d, 0' % (SQ[ti], k, k))
                else: pend.append('v_dot2_f32_bf16 v%d, v%d, v%d, v%d' % (SQ[ti], k, k, SQ[ti]))
    for x in pend: p(x)

def exp_phase(p, Ps, Ss, vEPS):
    regs = [(P + r, S + r) for P, S in zip(Ps, Ss) for r in range(4)]
    for a, b in regs: p('v_cvt_pk_bf16_f32 v%d, 0, v%d' % (a, a))
    for a, b in regs: p('v_cvt_pk_bf16_f32 v%d, 0, v%d' % (b, b))
    for a, b in regs: p('v_fma_f32 v%d, v%d, -0.5, v%d' % (a, b, a))
    for a, b in regs: p('v_cvt_pk_bf16_f32 v%d, 0, v%d' % (a, a))
    for a, b in regs: p('v_mul_f32 v%d, s%d, v%d' % (a, sL2E, a))
    for a, b in regs: p('v_exp_f32 v%d, v%d' % (a, a))
    for a, b in regs: p('v_cvt_pk_bf16_f32 v%d, 0, v%d' % (a, a))
    for a, b in regs: p('v_fma_f32 v%d, v%d, s%d, v%d' % (a, a, sQ25, vEPS))

def srd(p, d, base, off, size):
    if off is None:
        p('s_mov_b32 s%d, s%d' % (d, base)); p('s_mov_b32 s%d, s%d' % (d + 1, base + 1))
    else:
        p('s_add_u32 s%d, s%d, s%d' % (d, base, off)); p('s_addc_u32 s%d, s%d, 0' % (d + 1, base + 1))
    p('s_mov_b32 s%d, 0x%x' % (d + 2, size)); p('s_mov_b32 s%d, 0x00020000' % (d + 3))

WS_Z = 0x200000

def final_stage(p, KV, Z, PQ, T, vEPS, vOUTOFF, sOUT):
    for s in range(1, 8):
        for h in range(2):
            p('v_pk_add_f32 %s, %s, %s' % (vr(KV + 2 * h, 2), vr(KV + 2 * h, 2), vr(KV + 4 * s + 2 * h, 2)))
        for h in range(2):
            p('v_pk_add_f32 %s, %s, %s' % (vr(Z + 2 * h, 2), vr(Z + 2 * h, 2), vr(Z + 4 * s + 2 * h, 2)))
    for r in range(4): p('v_cvt_pk_bf16_f32 v%d, 0, v%d' % (KV + r, KV + r))
    for r in range(4): p('v_cvt_pk_bf16_f32 v%d, 0, v%d' % (Z + r, Z + r))
    N, Dn, N2, D2 = T, T + 1, T + 2, T + 3
    p('v_mul_f32 v%d, v%d, v%d' % (N, PQ, KV)); p('v_mul_f32 v%d, v%d, v%d' % (Dn, PQ, Z))
    for r in range(1, 4):
        p('v_fmac_f32 v%d, v%d, v%d' % (N, PQ + r, KV + r)); p('v_fmac_f32 v%d, v%d, v%d' % (Dn, PQ + r, Z + r))
    for sw in ('v_permlane32_swap_b32', 'v_permlane16_swap_b32'):
        p('v_mov_b32 v%d, v%d' % (N2, N)); p('v_mov_b32 v%d, v%d' % (D2, Dn))
        p('%s v%d, v%d' % (sw, N, N2)); p('%s v%d, v%d' % (sw, Dn, D2))
        p('v_add_f32 v%d, v%d, v%d' % (N, N, N2)); p('v_add_f32 v%d, v%d, v%d' % (Dn, Dn, D2))
    p('v_cvt_pk_bf16_f32 v%d, 0, v%d' % (N, N)); p('v_cvt_pk_bf16_f32 v%d, 0, v%d' % (Dn, Dn))
    p('v_add_f32 v%d, v%d, v%d' % (Dn, Dn, vEPS))
    p('v_cvt_pk_bf16_f32 v%d, 0, v%d' % (Dn, Dn))
    a, b, r_, e, q = T + 4, T + 5, T + 6, T + 7, T + 8
    p('v_div_scale_f32 v%d, s[60:61], v%d, v%d, v%d' % (b, Dn, Dn, N))
    p('v_div_scale_f32 v%d, vcc, v%d, v%d, v%d' % (a, N, Dn, N))
    p('v_rcp_f32 v%d, v%d' % (r_, b))
    p('v_fma_f32 v%d, -v%d, v%d, 1.0' % (e, b, r_))
    p('v_fmac_f32 v%d, v%d, v%d' % (r_, e, r_))
    p('v_mul_f32 v%d, v%d, v%d' % (q, a, r_))
    p('v_fma_f32 v%d, -v%d, v%d, v%d' % (e, b, q, a))
    p('v_fmac_f32 v%d, v%d, v%d' % (q, e, r_))
    p('v_fma_f32 v%d, -v%d, v%d, v%d' % (e, b, q, a))
    p('v_div_fmas_f32 v%d, v%d, v%d, v%d' % (e, e, r_, q))
    p('v_div_fixup_f32 v%d, v%d, v%d, v%d' % (e, e, Dn, N))
    p('v_cvt_pk_bf16_f32 v%d, v%d, v%d' % (e, e, e))
    p('buffer_store_short v%d, v%d, %s, 0 offen' % (e, vOUTOFF, sr(sOUT, 4)))

def phi_q(p, Q, OM, T, SQ, P, S, vONE, vEPS):
    scale_tiles(p, [Q], T, [SQ])
    for kk in range(4):
        p('v_mfma_f32_16x16x32_bf16 %s, %s, %s, %s' % (vr(P, 4), vr(OM + 4 * kk, 4), vr(Q + 4 * kk, 4), '0' if kk == 0 else vr(P, 4)))
    p('v_mfma_f32_16x16x4_f32 %s, v%d, v%d, 0' % (vr(S, 4), SQ, vONE))
    exp_phase(p, [P], [S], vEPS)
    for r in range(4): p('v_cvt_pk_bf16_f32 v%d, 0, v%d' % (P + r, P + r))

def main_kernel(opt):
    p = Prog()
    NT = ['', ' nt', ' sc1', ' sc1 nt', ' sc0 sc1', ' sc0 sc1 nt', ' sc0 nt', ' sc0'][opt.get('nt', 1)]
    vK, vOM, vV, vEPS, vONE, vW, vR = 1, 2, 3, 4, 5, 6, 7
    OM, KB, VB0, ACC, ZACC, PH, X = 8, 24, 152, 184, 216, 220, 236
    p('s_cmp_ge_u32 s2, 256')
    p('s_cbranch_scc1 L_end1')
    p('s_load_dwordx8 s[4:11], s[0:1], 0')
    p('s_load_dwordx4 s[12:15], s[0:1], 32')
    p('s_load_dwordx2 s[16:17], s[0:1], 48')
    p('v_lshrrev_b32 v1, 6, v0')
    p('v_and_b32 v0, 63, v0')
    p('v_readfirstlane_b32 s18, v1')
    p('s_and_b32 s19, s2, 31')
    p('s_lshr_b32 s3, s2, 5')
    p('s_lshl_b32 s36, s19, 21')
    p('s_lshl_b32 s37, s3, 18')
    p('s_add_u32 s36, s36, s37')
    p('s_lshl_b32 s37, s18, 15')
    p('s_add_u32 s36, s36, s37')
    p('v_and_b32 v8, 15, v0')
    p('v_lshrrev_b32 v9, 4, v0')
    p('v_lshlrev_b32 v10, 4, v9')
    p('v_lshl_add_u32 v%d, v8, 8, v10' % vOM)
    p('v_and_b32 v11, 3, v0')
    p('v_lshlrev_b32 v11, 2, v11')
    p('v_lshrrev_b32 v12, 2, v8')
    p('v_add_u32 v11, v11, v12')
    p('v_lshl_add_u32 v%d, v11, 8, v10' % vK)
    p('v_lshlrev_b32 v%d, 4, v0' % vV)
    for t in range(1, 8): p('s_mov_b32 s%d, %d' % (sOFF + t, 4096 * t))
    def so(t): return '0' if t == 0 else 's%d' % (sOFF + t)
    p('s_waitcnt lgkmcnt(0)')
    srd(p, 20, 6, 36, 32768)
    srd(p, 28, 10, None, 4096)
    def loadK(t):
        for kk in range(4):
            p('buffer_load_dwordx4 %s, v%d, s[20:23], %s offen offset:%d%s' % (vr(KB + 16 * t + 4 * kk, 4), vK, so(t), 64 * kk, NT))
    def loadV(u, base):
        for j in range(8):
            p('buffer_load_dwordx4 %s, v%d, s[24:27], %s offen offset:%d%s' % (vr(base + 4 * j, 4), vV, so(2 * u + (j >> 2)), 1024 * (j & 3), NT))
    loadK(0)
    for kk in range(4):
        p('buffer_load_dwordx4 %s, v%d, s[28:31], 0 offen offset:%d' % (vr(OM + 4 * kk, 4), vOM, 64 * kk))
    srd(p, 24, 8, 36, 32768)
    for t in range(1, 8): loadK(t)
    loadV(0, VB0)
    consts(p)
    p('v_mov_b32 v%d, 0x%08x' % (vEPS, EPS))
    p('v_mov_b32 v%d, 1.0' % vONE)
    p('s_lshl_b32 s37, s18, 13')
    p('v_lshrrev_b32 v%d, 4, v0' % X)
    p('v_and_b32 v%d, 15, v0' % (X + 1))
    p('v_lshlrev_b32 v%d, 11, v%d' % (X, X))
    p('v_lshl_add_u32 v%d, v%d, 7, v%d' % (vW, X + 1, X))
    p('v_and_b32 v%d, 7, v0' % (X + 2))
    p('v_lshl_add_u32 v%d, v%d, 4, v%d' % (vW, X + 2, vW))
    p('v_add_u32 v%d, s37, v%d' % (vW, vW))
    p('s_lshl_b32 s38, s18, 1')
    p('v_lshrrev_b32 v%d, 3, v%d' % (X + 3, X + 1))
    p('v_add_u32 v%d, s38, v%d' % (X + 3, X + 3))
    p('v_lshl_add_u32 v%d, v%d, 7, v%d' % (vR, X + 3, X))
    p('v_and_b32 v%d, 7, v%d' % (X + 3, X + 3))
    p('v_xor_b32 v%d, v%d, v%d' % (X + 3, X + 3, X + 2))
    p('v_lshl_add_u32 v%d, v%d, 4, v%d' % (vR, X + 3, vR))
    T, SQ, P0, P1, S0, S1 = ACC, ACC + 8, ACC + 12, ACC + 16, ACC + 20, ACC + 24
    vbase = [VB0, KB, KB + 32, KB + 64]
    for u in range(4):
        p.comment('K pair %d' % u)
        p('s_waitcnt vmcnt(32)')
        a, b = KB + 32 * u, KB + 32 * u + 16
        scale_tiles(p, [a, b], T, [SQ, SQ + 1])
        for kk in range(4):
            for kb, P in ((a, P0), (b, P1)):
                p('v_mfma_f32_16x16x32_bf16 %s, %s, %s, %s' % (vr(P, 4), vr(kb + 4 * kk, 4), vr(OM + 4 * kk, 4), '0' if kk == 0 else vr(P, 4)))
        p('v_mfma_f32_16x16x4_f32 %s, v%d, v%d, 0' % (vr(S0, 4), SQ, vONE))
        p('v_mfma_f32_16x16x4_f32 %s, v%d, v%d, 0' % (vr(S1, 4), SQ + 1, vONE))
        if u < 3: loadV(u + 1, vbase[u + 1])
        exp_phase(p, [P0, P1], [S0, S1], vEPS)
        for i, P in enumerate((P0, P1)):
            p('v_cvt_pk_bf16_f32 v%d, v%d, v%d' % (PH + 4 * u + 2 * i, P, P + 1))
            p('v_cvt_pk_bf16_f32 v%d, v%d, v%d' % (PH + 4 * u + 2 * i + 1, P + 2, P + 3))
    TB = KB + 96
    ONES = X
    for i in range(4): p('v_mov_b32 v%d, 0x3f803f80' % (ONES + i))
    for t in range(8): p('v_xor_b32 v%d, %d, v%d' % (X + 4 + t, t << 4, vW) if t else 'v_mov_b32 v%d, v%d' % (X + 4, vW))
    for u in range(4):
        p.comment('V tile %d' % u)
        p('s_waitcnt vmcnt(%d)' % (24 - 8 * u))
        vb = vbase[u]
        p('v_mfma_f32_16x16x32_bf16 %s, %s, %s, %s' % (vr(ZACC, 4), vr(PH + 4 * u, 4), vr(ONES, 4), '0' if u == 0 else vr(ZACC, 4)))
        for w in range(4):
            tb = TB + 8 * w
            for q in range(4):
                p('v_perm_b32 v%d, v%d, v%d, s%d' % (tb + q, vb + 4 * (2 * q + 1) + w, vb + 4 * (2 * q) + w, sSELLO))
            for q in range(4):
                p('v_perm_b32 v%d, v%d, v%d, s%d' % (tb + 4 + q, vb + 4 * (2 * q + 1) + w, vb + 4 * (2 * q) + w, sSELHI))
            if w > 0:
                for b in range(2):
                    t = 2 * (w - 1) + b
                    p('v_mfma_f32_16x16x32_bf16 %s, %s, %s, %s' % (vr(ACC + 4 * t, 4), vr(PH + 4 * u, 4), vr(TB + 8 * (w - 1) + 4 * b, 4), '0' if u == 0 else vr(ACC + 4 * t, 4)))
        for b in range(2):
            t = 6 + b
            p('v_mfma_f32_16x16x32_bf16 %s, %s, %s, %s' % (vr(ACC + 4 * t, 4), vr(PH + 4 * u, 4), vr(TB + 24 + 4 * b, 4), '0' if u == 0 else vr(ACC + 4 * t, 4)))
    p('v_lshrrev_b32 v8, 4, v0')
    p('v_lshlrev_b32 v8, 4, v8')
    p('s_lshl_b32 s37, s18, 6')
    p('s_add_u32 s37, s37, 65536')
    p('v_add_u32 v9, s37, v8')
    p('s_mov_b64 exec, 0x0001000100010001') if False else None
    p('s_mov_b32 exec_lo, 0x00010001')
    p('s_mov_b32 exec_hi, 0x00010001')
    p('ds_write_b128 v9, %s' % vr(ZACC, 4))
    p('s_mov_b64 exec, -1')
    for t in range(8): p('ds_write_b128 v%d, %s' % (X + 4 + t, vr(ACC + 4 * t, 4)))
    p('s_lshl_b32 s36, s19, 16')
    p('s_lshl_b32 s37, s18, 13')
    p('s_add_u32 s36, s36, s37')
    p('s_lshl_b32 s37, s3, 10')
    p('s_add_u32 s36, s36, s37')
    srd(p, 20, 16, 36, 1024)
    p('s_lshl_b32 s36, s19, 9')
    p('s_lshl_b32 s37, s3, 6')
    p('s_add_u32 s36, s36, s37')
    p('s_add_u32 s36, s36, 0x%x' % WS_Z)
    srd(p, 24, 16, 36, 64)
    p('s_waitcnt lgkmcnt(0)')
    p('s_barrier')
    R = KB
    for w in range(8): p('ds_read_b128 %s, v%d offset:%d' % (vr(R + 4 * w, 4), vR, 8192 * w))
    p('s_cmp_lg_u32 s18, 7')
    p('s_cbranch_scc1 L_noz')
    p('v_add_u32 v9, 65536, v8')
    for w in range(8): p('ds_read_b128 %s, v9 offset:%d' % (vr(R + 32 + 4 * w, 4), 64 * w))
    p('s_waitcnt lgkmcnt(0)')
    for w in range(1, 8):
        for h in range(2): p('v_pk_add_f32 %s, %s, %s' % (vr(R + 32 + 2 * h, 2), vr(R + 32 + 2 * h, 2), vr(R + 32 + 4 * w + 2 * h, 2)))
    p('s_mov_b32 exec_lo, 0x00010001')
    p('s_mov_b32 exec_hi, 0x00010001')
    p('buffer_store_dwordx4 %s, v8, s[24:27], 0 offen' % vr(R + 32, 4))
    p('s_mov_b64 exec, -1')
    p('L_noz:')
    for w in range(1, 8):
        p('s_waitcnt lgkmcnt(%d)' % (7 - w))
        for h in range(2): p('v_pk_add_f32 %s, %s, %s' % (vr(R + 2 * h, 2), vr(R + 2 * h, 2), vr(R + 4 * w + 2 * h, 2)))
    p('buffer_store_dwordx4 %s, v%d, s[20:23], 0 offen' % (vr(R, 4), vV))
    p('L_end1:')
    p('s_endpgm')
    return p

def fin_kernel(opt):
    p = Prog()
    vOM, vQ, vV, vEPS, vONE, vZ, vO = 1, 2, 3, 4, 5, 6, 7
    OM, Q, KV, Z, T = 8, 24, 40, 72, 104
    p('s_cmp_ge_u32 s2, 256')
    p('s_cbranch_scc1 L_end2')
    p('s_load_dwordx8 s[4:11], s[0:1], 0')
    p('s_load_dwordx4 s[12:15], s[0:1], 32')
    p('s_load_dwordx2 s[16:17], s[0:1], 48')
    p('s_and_b32 s19, s2, 31')
    p('s_lshr_b32 s3, s2, 5')
    p('v_and_b32 v8, 15, v0')
    p('v_lshrrev_b32 v9, 4, v0')
    p('v_lshlrev_b32 v%d, 4, v9' % vQ)
    p('v_lshl_add_u32 v%d, v8, 8, v%d' % (vOM, vQ))
    p('v_lshlrev_b32 v%d, 4, v0' % vV)
    p('v_lshlrev_b32 v%d, 1, v0' % vO)
    p('s_lshl_b32 s36, s19, 16')
    p('s_lshl_b32 s37, s3, 13')
    p('s_add_u32 s36, s36, s37')
    p('s_lshl_b32 s38, s19, 9')
    p('s_add_u32 s38, s38, 0x%x' % WS_Z)
    p('s_lshl_b32 s39, s19, 8')
    p('s_lshl_b32 s37, s3, 5')
    p('s_add_u32 s40, s39, s37')
    p('s_movk_i32 s41, 0x1000')
    p('s_waitcnt lgkmcnt(0)')
    srd(p, 20, 16, 36, 8192)
    srd(p, 24, 16, 38, 512)
    srd(p, 28, 10, None, 4096)
    srd(p, 32, 4, 39, 256)
    srd(p, 44, 12, 40, 32)
    for kk in range(4): p('buffer_load_dwordx4 %s, v%d, s[32:35], 0 offen offset:%d' % (vr(Q + 4 * kk, 4), vQ, 64 * kk))
    for kk in range(4): p('buffer_load_dwordx4 %s, v%d, s[28:31], 0 offen offset:%d' % (vr(OM + 4 * kk, 4), vOM, 64 * kk))
    for s in range(8): p('buffer_load_dwordx4 %s, v%d, s[20:23], %s offen offset:%d' % (vr(KV + 4 * s, 4), vV, '0' if s < 4 else 's41', 1024 * (s & 3)))
    for s in range(8): p('buffer_load_dwordx4 %s, v%d, s[24:27], 0 offen offset:%d' % (vr(Z + 4 * s, 4), vQ, 64 * s))
    consts(p)
    p('v_mov_b32 v%d, 0x%08x' % (vEPS, EPS))
    p('v_mov_b32 v%d, 1.0' % vONE)
    p('s_waitcnt vmcnt(16)')
    phi_q(p, Q, OM, T, T + 8, T + 12, T + 16, vONE, vEPS)
    p('s_waitcnt vmcnt(0)')
    final_stage(p, KV, Z, T + 12, T + 20, vEPS, vO, 44)
    p('L_end2:')
    p('s_endpgm')
    return p

def kd(name, vg, sg=72):
    return """.amdhsa_kernel %s
  .amdhsa_next_free_vgpr %d
  .amdhsa_next_free_sgpr %d
  .amdhsa_accum_offset %d
  .amdhsa_group_segment_fixed_size 0
  .amdhsa_kernarg_size 56
  .amdhsa_user_sgpr_count 2
  .amdhsa_user_sgpr_kernarg_segment_ptr 1
  .amdhsa_system_sgpr_workgroup_id_x 1
  .amdhsa_float_denorm_mode_32 3
.end_amdhsa_kernel
""" % (name, vg, sg, (vg + 3) // 4 * 4)

def build(opt):
    m = main_kernel(opt); f = fin_kernel(opt)
    n1, n2 = 'standalone__linear_kernel_rfa__decode_kernel', 'rfa_fin_kernel'
    s = HDR
    s += '; @launch kernel=%s grid=(256,1,1) block=(512,1,1) lds=66048\n' % n1
    s += '; @launch kernel=%s grid=(256,1,1) block=(64,1,1) lds=0\n' % n2
    s += '.amdgcn_target "amdgcn-amd-amdhsa--gfx950"\n.text\n'
    for n, pr in ((n1, m), (n2, f)):
        s += '.globl %s\n.p2align 8\n.type %s,@function\n%s:\n' % (n, n, n)
        s += pr.finalize() + '\n'
        sys.stderr.write('%s: %d instr, %d nop states\n' % (n, len(pr.out), pr.nops))
    s += '.section .rodata,"a"\n.p2align 6\n' + kd(n1, 256) + '.p2align 6\n' + kd(n2, 136)
    return s

if __name__ == '__main__':
    opt = dict(kv.split('=') for kv in sys.argv[2:])
    opt = {k: int(v) for k, v in opt.items()}
    open(sys.argv[1], 'w').write(build(opt))
```

```python
import sys, struct
from asmlib import Prog
from gen1 import *

NAME = 'standalone__linear_kernel_rfa__decode_kernel'

def main_kernel(opt):
    p = Prog()
    STAMP = opt.get('stamp', 0)
    XMAP = opt.get('xmap', 0)
    PF = opt.get('pf', 0)
    NOPOLL = opt.get('nopoll', 0)
    SIG = opt.get('sig', 0)
    DST = opt.get('dstamp', 0)
    NOCLR = opt.get('noclr', 0)
    if DST: STAMP = 1
    NT = ['', ' nt', ' sc1', ' sc1 nt', ' sc0 sc1', ' sc0 sc1 nt', ' sc0 nt', ' sc0'][opt.get('nt', 1)]
    HS = [' sc1', ' sc0 sc1'][opt.get('hs', 0)]
    vK, vOM, vV, vEPS, vONE, vW, vR = 1, 2, 3, 4, 5, 6, 7
    OM, KB, VB0, ACC, ZACC, PH, X = 8, 24, 152, 184, 216, 220, 236
    ONES, WA, PQ, vG, vC, vZERO = X, X + 4, X + 12, X + 16, X + 17, X + 18
    CONS, CLR, ZW = 0, 1, 7
    sST = 64
    def stamp(i):
        if STAMP:
            p('s_memrealtime %s' % sr(sST + 2 * i, 2)); p('s_waitcnt lgkmcnt(0)')
    p('s_cmp_ge_u32 s2, 256')
    p('s_cbranch_scc1 L_end')
    p('s_load_dwordx8 s[4:11], s[0:1], 0')
    p('s_load_dwordx4 s[12:15], s[0:1], 32')
    p('s_load_dwordx2 s[16:17], s[0:1], 48')
    if STAMP: p('s_memrealtime %s' % sr(sST, 2))
    p('v_lshrrev_b32 v1, 6, v0')
    p('v_and_b32 v0, 63, v0')
    p('v_readfirstlane_b32 s18, v1')
    if PF:
        p('s_getpc_b64 s[62:63]')
        p('v_lshlrev_b32 v%d, 7, v0' % vC)
        for i in range(PF):
            p('global_load_dword v%d, v%d, s[62:63]' % (vZERO + 1, vC))
            if i + 1 < PF: p('v_add_u32 v%d, 0x2000, v%d' % (vC, vC))
    if XMAP == 0:
        p('s_and_b32 s19, s2, 31')
        p('s_lshr_b32 s3, s2, 5')
    else:
        p('s_lshr_b32 s19, s2, 3')
        p('s_and_b32 s3, s2, 7')
    p('s_lshl_b32 s36, s19, 21')
    p('s_lshl_b32 s37, s3, 18')
    p('s_add_u32 s36, s36, s37')
    p('s_lshl_b32 s37, s18, 15')
    p('s_add_u32 s36, s36, s37')
    p('v_and_b32 v8, 15, v0')
    p('v_lshrrev_b32 v9, 4, v0')
    p('v_lshlrev_b32 v%d, 4, v9' % vG)
    p('v_lshl_add_u32 v%d, v8, 8, v%d' % (vOM, vG))
    p('v_and_b32 v11, 3, v0')
    p('v_lshlrev_b32 v11, 2, v11')
    p('v_lshrrev_b32 v12, 2, v8')
    p('v_add_u32 v11, v11, v12')
    p('v_lshl_add_u32 v%d, v11, 8, v%d' % (vK, vG))
    p('v_lshlrev_b32 v%d, 4, v0' % vV)
    for t in range(1, 8): p('s_mov_b32 s%d, %d' % (sOFF + t, 4096 * t))
    def so(t): return '0' if t == 0 else 's%d' % (sOFF + t)
    p('s_lshl_b32 s38, s19, 16')
    p('s_lshl_b32 s37, s3, 10')
    p('s_add_u32 s56, s38, s37')
    p('s_lshl_b32 s37, s3, 13')
    p('s_add_u32 s57, s38, s37')
    p('s_lshl_b32 s58, s19, 9')
    p('s_add_u32 s58, s58, 0x%x' % WS_Z)
    p('s_lshl_b32 s59, s3, 6')
    p('s_lshl_b32 s39, s19, 8')
    p('s_waitcnt lgkmcnt(0)')
    srd(p, 20, 6, 36, 32768)
    srd(p, 32, 16, 56, 65536)
    srd(p, 92, 16, 58, 512)
    p('s_cmp_lg_u32 s18, %d' % (99 if NOCLR else CLR))
    p('s_cbranch_scc1 L_noclr')
    for i in range(4): p('v_mov_b32 v%d, -1' % (ACC + i))
    for j in range(8):
        if j & 1 == 0: sj = so(j)
        p('s_mov_b32 s37, %d' % (8192 * j))
        p('buffer_store_dwordx4 %s, v%d, s[32:35], s37 offen%s' % (vr(ACC, 4), vV, HS))
    p('buffer_store_dwordx4 %s, v%d, s[92:95], s59 offen%s' % (vr(ACC, 4), vG, HS))
    p('L_noclr:')
    def loadK(t):
        for kk in range(4):
            p('buffer_load_dwordx4 %s, v%d, s[20:23], %s offen offset:%d%s' % (vr(KB + 16 * t + 4 * kk, 4), vK, so(t), 64 * kk, NT))
    def loadV(u, base):
        for j in range(8):
            p('buffer_load_dwordx4 %s, v%d, s[24:27], %s offen offset:%d%s' % (vr(base + 4 * j, 4), vV, so(2 * u + (j >> 2)), 1024 * (j & 3), NT))
    loadK(0); loadK(1)
    srd(p, 28, 10, None, 4096)
    for kk in range(4):
        p('buffer_load_dwordx4 %s, v%d, s[28:31], 0 offen offset:%d' % (vr(OM + 4 * kk, 4), vOM, 64 * kk))
    srd(p, 28, 4, 39, 256)
    for kk in range(4):
        p('buffer_load_dwordx4 %s, v%d, s[28:31], 0 offen offset:%d' % (vr(PH + 4 * kk, 4), vG, 64 * kk))
    srd(p, 24, 8, 36, 32768)
    for t in range(2, 8): loadK(t)
    loadV(0, VB0)
    consts(p)
    p('v_mov_b32 v%d, 0x%08x' % (vEPS, EPS))
    p('v_mov_b32 v%d, 1.0' % vONE)
    p('v_mov_b32 v%d, 0' % vZERO)
    p('s_lshl_b32 s37, s18, 13')
    p('v_lshlrev_b32 v%d, 7, v%d' % (X, vG))
    p('v_and_b32 v%d, 15, v0' % (X + 1))
    p('v_lshl_add_u32 v%d, v%d, 7, v%d' % (vW, X + 1, X))
    p('v_and_b32 v%d, 7, v0' % (X + 2))
    p('v_lshl_add_u32 v%d, v%d, 4, v%d' % (vW, X + 2, vW))
    p('v_add_u32 v%d, s37, v%d' % (vW, vW))
    p('s_lshl_b32 s38, s18, 1')
    p('v_lshrrev_b32 v%d, 3, v%d' % (X + 3, X + 1))
    p('v_add_u32 v%d, s38, v%d' % (X + 3, X + 3))
    p('v_lshl_add_u32 v%d, v%d, 7, v%d' % (vR, X + 3, X))
    p('v_and_b32 v%d, 7, v%d' % (X + 3, X + 3))
    p('v_xor_b32 v%d, v%d, v%d' % (X + 3, X + 3, X + 2))
    p('v_lshl_add_u32 v%d, v%d, 4, v%d' % (vR, X + 3, vR))
    for i in range(4): p('v_mov_b32 v%d, 0x3f803f80' % (ONES + i))
    for t in range(8): p('v_xor_b32 v%d, %d, v%d' % (WA + t, t << 4, vW) if t else 'v_mov_b32 v%d, v%d' % (WA, vW))
    p('s_mov_b64 s[62:63], s[14:15]')
    if SIG == 0:
        p('s_lshl_b32 s37, s19, 2')
        p('s_add_u32 s37, s37, 128')
    else:
        p('s_lshl_b32 s37, s19, 3')
    p('s_add_u32 s14, s14, s37')
    p('s_addc_u32 s15, s15, 0')
    T, SQ, P0, P1, S0, S1 = ACC, ACC + 8, ACC + 12, ACC + 16, ACC + 20, ACC + 24
    vbase = [VB0, KB, KB + 32, KB + 64]
    p('s_waitcnt vmcnt(32)')
    stamp(1)
    p('s_cmp_lg_u32 s18, %d' % CLR)
    p('s_cbranch_scc1 L_nosig')
    p('v_mov_b32 v%d, 1' % vC)
    p('s_mov_b64 exec, 1')
    if NOCLR: pass
    elif SIG == 0: p('global_atomic_add v%d, v%d, s[14:15] sc1' % (vZERO, vC))
    else:
        p('v_mov_b32 v%d, s3' % (vZERO + 1))
        p('global_store_byte v%d, v%d, s[14:15] sc1' % (vZERO + 1, vC))
    p('s_mov_b64 exec, -1')
    p('L_nosig:')
    p('s_cmp_lg_u32 s18, %d' % CONS)
    p('s_cbranch_scc1 L_noq')
    phi_q(p, PH, OM, T, SQ, PQ, S0, vONE, vEPS)
    p('L_noq:')
    for u in range(4):
        p.comment('K pair %d' % u)
        if u: p('s_waitcnt vmcnt(32)')
        a, b = KB + 32 * u, KB + 32 * u + 16
        scale_tiles(p, [a, b], T, [SQ, SQ + 1])
        for kk in range(4):
            for kb, P in ((a, P0), (b, P1)):
                p('v_mfma_f32_16x16x32_bf16 %s, %s, %s, %s' % (vr(P, 4), vr(kb + 4 * kk, 4), vr(OM + 4 * kk, 4), '0' if kk == 0 else vr(P, 4)))
        p('v_mfma_f32_16x16x4_f32 %s, v%d, v%d, 0' % (vr(S0, 4), SQ, vONE))
        p('v_mfma_f32_16x16x4_f32 %s, v%d, v%d, 0' % (vr(S1, 4), SQ + 1, vONE))
        if u < 3: loadV(u + 1, vbase[u + 1])
        exp_phase(p, [P0, P1], [S0, S1], vEPS)
        for i, P in enumerate((P0, P1)):
            p('v_cvt_pk_bf16_f32 v%d, v%d, v%d' % (PH + 4 * u + 2 * i, P, P + 1))
            p('v_cvt_pk_bf16_f32 v%d, v%d, v%d' % (PH + 4 * u + 2 * i + 1, P + 2, P + 3))
    stamp(2)
    TB = KB + 96
    for u in range(4):
        p.comment('V tile %d' % u)
        p('s_waitcnt vmcnt(%d)' % (24 - 8 * u))
        if u == 2:
            p('s_cmp_lg_u32 s18, %d' % CONS)
            p('s_cbranch_scc1 L_nochk')
            if SIG == 0: p('global_load_dword v%d, v%d, s[14:15] sc1' % (vC, vZERO))
            else: p('global_load_dwordx2 v[10:11], v%d, s[14:15] sc1' % (vZERO))
            p('L_nochk:')
        vb = vbase[u]
        p('v_mfma_f32_16x16x32_bf16 %s, %s, %s, %s' % (vr(ZACC, 4), vr(PH + 4 * u, 4), vr(ONES, 4), '0' if u == 0 else vr(ZACC, 4)))
        for w in range(4):
            tb = TB + 8 * w
            for q in range(4):
                p('v_perm_b32 v%d, v%d, v%d, s%d' % (tb + q, vb + 4 * (2 * q + 1) + w, vb + 4 * (2 * q) + w, sSELLO))
            for q in range(4):
                p('v_perm_b32 v%d, v%d, v%d, s%d' % (tb + 4 + q, vb + 4 * (2 * q + 1) + w, vb + 4 * (2 * q) + w, sSELHI))
            if w > 0:
                for b in range(2):
                    t = 2 * (w - 1) + b
                    p('v_mfma_f32_16x16x32_bf16 %s, %s, %s, %s' % (vr(ACC + 4 * t, 4), vr(PH + 4 * u, 4), vr(TB + 8 * (w - 1) + 4 * b, 4), '0' if u == 0 else vr(ACC + 4 * t, 4)))
        for b in range(2):
            t = 6 + b
            p('v_mfma_f32_16x16x32_bf16 %s, %s, %s, %s' % (vr(ACC + 4 * t, 4), vr(PH + 4 * u, 4), vr(TB + 24 + 4 * b, 4), '0' if u == 0 else vr(ACC + 4 * t, 4)))
    stamp(3)
    p('s_lshl_b32 s37, s18, 6')
    p('s_add_u32 s37, s37, 65536')
    p('v_add_u32 v9, s37, v%d' % vG)
    p('s_mov_b32 exec_lo, 0x00010001')
    p('s_mov_b32 exec_hi, 0x00010001')
    p('ds_write_b128 v9, %s' % vr(ZACC, 4))
    p('s_mov_b64 exec, -1')
    for t in range(8): p('ds_write_b128 v%d, %s' % (WA + t, vr(ACC + 4 * t, 4)))
    p('s_lshl_b32 s37, s18, 13')
    p('s_waitcnt lgkmcnt(0)')
    p('s_barrier')
    stamp(4)
    R = KB
    for w in range(8): p('ds_read_b128 %s, v%d offset:%d' % (vr(R + 4 * w, 4), vR, 8192 * w))
    p('s_cmp_lg_u32 s18, %d' % ZW)
    p('s_cbranch_scc1 L_noz')
    p('v_add_u32 v9, 65536, v%d' % vG)
    for w in range(8): p('ds_read_b128 %s, v9 offset:%d' % (vr(R + 32 + 4 * w, 4), 64 * w))
    p('s_waitcnt lgkmcnt(0)')
    for w in range(1, 8):
        for h in range(2): p('v_pk_add_f32 %s, %s, %s' % (vr(R + 32 + 2 * h, 2), vr(R + 32 + 2 * h, 2), vr(R + 32 + 4 * w + 2 * h, 2)))
    p('s_mov_b32 exec_lo, 0x00010001')
    p('s_mov_b32 exec_hi, 0x00010001')
    p('buffer_store_dwordx4 %s, v%d, s[92:95], s59 offen%s' % (vr(R + 32, 4), vG, HS))
    p('s_mov_b64 exec, -1')
    p('L_noz:')
    for w in range(1, 8):
        p('s_waitcnt lgkmcnt(%d)' % (7 - w))
        for h in range(2): p('v_pk_add_f32 %s, %s, %s' % (vr(R + 2 * h, 2), vr(R + 2 * h, 2), vr(R + 4 * w + 2 * h, 2)))
    p('buffer_store_dwordx4 %s, v%d, s[32:35], s37 offen%s' % (vr(R, 4), vV, HS))
    if NOPOLL:
        p('L_end:')
        p('s_endpgm')
        return p
    p('s_cmp_lg_u32 s18, %d' % CONS)
    p('s_cbranch_scc1 L_end')
    stamp(5)
    KV, Z, TT = KB + 32, KB + 64, KB + 96
    srd(p, 20, 16, 57, 8192)
    p('s_lshl_b32 s37, s3, 5')
    p('s_add_u32 s39, s39, s37')
    srd(p, 24, 12, 39, 32)
    p('v_lshlrev_b32 v%d, 1, v0' % vK)
    p('s_mov_b32 s38, 0x40000')
    def chk():
        if SIG == 0:
            p('v_readfirstlane_b32 s37, v%d' % vC)
            p('s_cmp_ge_u32 s37, 8')
        else:
            p('v_and_b32 v10, v10, v11')
            p('v_readfirstlane_b32 s37, v10')
            p('s_cmp_eq_u32 s37, 0x01010101')
        p('s_cbranch_scc1 L_poll')
    chk()
    p('L_spin:')
    if SIG == 0: p('global_load_dword v%d, v%d, s[14:15] sc1' % (vC, vZERO))
    else: p('global_load_dwordx2 v[10:11], v%d, s[14:15] sc1' % (vZERO))
    p('s_waitcnt vmcnt(0)')
    chk()
    p('s_sub_u32 s38, s38, 1')
    p('s_cbranch_scc0 L_spin')
    p('L_poll:')
    for s in range(8): p('buffer_load_dwordx4 %s, v%d, s[20:23], %s offen offset:%d%s' % (vr(KV + 4 * s, 4), vV, '0' if s < 4 else 's41', 1024 * (s & 3), HS))
    for s in range(8): p('buffer_load_dwordx4 %s, v%d, s[92:95], 0 offen offset:%d%s' % (vr(Z + 4 * s, 4), vG, 64 * s, HS))
    M0, M1 = TT, TT + 1
    for s in range(16):
        p('s_waitcnt vmcnt(%d)' % (15 - s))
        b = KV + 4 * s
        m = M0 + (s & 1)
        if s < 2:
            p('v_max3_u32 v%d, v%d, v%d, v%d' % (m, b, b + 1, b + 2)); p('v_max_u32 v%d, v%d, v%d' % (m, m, b + 3))
        else:
            p('v_max3_u32 v%d, v%d, v%d, v%d' % (m, m, b, b + 1)); p('v_max3_u32 v%d, v%d, v%d, v%d' % (m, m, b + 2, b + 3))
    p('v_max_u32 v%d, v%d, v%d' % (M0, M0, M1))
    p('v_cmp_eq_u32 vcc, -1, v%d' % M0)
    p('s_cbranch_vccz L_ready')
    p('s_sub_u32 s38, s38, 1')
    p('s_cbranch_scc0 L_poll')
    p('L_ready:')
    stamp(6)
    final_stage(p, KV, Z, PQ, TT, vEPS, vK, 24)
    if STAMP:
        p('s_waitcnt vmcnt(0)')
        stamp(7)
        if DST:
            p('s_mov_b64 exec, 1')
            for i in range(8):
                p('v_mov_b32 v%d, s%d' % (KV, sST + 2 * i))
                p('global_atomic_umax v%d, v%d, s[62:63] offset:%d sc1' % (vZERO, KV, 4 * i))
                p('v_not_b32 v%d, v%d' % (KV + 1, KV))
                p('global_atomic_umax v%d, v%d, s[62:63] offset:%d sc1' % (vZERO, KV + 1, 32 + 4 * i))
            p('s_mov_b64 exec, -1')
        p('s_lshl_b32 s36, s2, 6')
        p('s_add_u32 s36, s36, 0x8000000')
        srd(p, 20, 16, 36, 64)
        for i in range(16): p('v_mov_b32 v%d, s%d' % (KV + i, sST + i))
        for i in range(4): p('buffer_store_dwordx4 %s, v%d, s[20:23], 0 offen offset:%d' % (vr(KV + 4 * i, 4), vZERO, 16 * i))
    p('L_end:')
    p('s_endpgm')
    return p

def build(opt):
    m = main_kernel(opt)
    s = HDR
    NP = opt.get('nopoll', 0)
    if NP:
        s += '; @launch kernel=%s grid=(256,1,1) block=(512,1,1) lds=66048\n' % NAME
        s += '; @launch kernel=rfa_fin_kernel grid=(256,1,1) block=(64,1,1) lds=0\n'
    else:
        s += '; @launch grid=(256,1,1) block=(512,1,1) lds=66048\n'
    s += '.amdgcn_target "amdgcn-amd-amdhsa--gfx950"\n.text\n'
    s += '.globl %s\n.p2align 8\n.type %s,@function\n%s:\n' % (NAME, NAME, NAME)
    s += m.finalize() + '\n'
    if opt.get('pf', 0): s += '.fill 4096, 4, 0xbf800000\n'
    sys.stderr.write('%s: %d instr, %d nop states\n' % (NAME, len(m.out), m.nops))
    if NP:
        n = 'rfa_fin_kernel'
        s += '.globl %s\n.p2align 8\n.type %s,@function\n%s:\n' % (n, n, n) + fin_kernel(opt).finalize() + '\n'
    s += '.section .rodata,"a"\n.p2align 6\n' + kd(NAME, 256, 96)
    if NP: s += '.p2align 6\n' + kd('rfa_fin_kernel', 136)
    return s

if __name__ == '__main__':
    opt = dict(kv.split('=') for kv in sys.argv[2:])
    opt = {k: int(v) for k, v in opt.items()}
    open(sys.argv[1], 'w').write(build(opt))
```

```python
import re

def regs_of(tok):
    tok = tok.strip()
    tok = re.sub(r'^-', '', tok)
    m = re.fullmatch(r'\|?abs\((.*)\)\|?', tok)
    if m: tok = m.group(1)
    tok = tok.strip('|')
    m = re.fullmatch(r'([vsa])(\d+)', tok)
    if m: return {(m.group(1), int(m.group(2)))}
    m = re.fullmatch(r'([vsa])\[(\d+):(\d+)\]', tok)
    if m: return {(m.group(1), i) for i in range(int(m.group(2)), int(m.group(3)) + 1)}
    if tok == 'vcc': return {('s', 'vcc')}
    if tok == 'exec': return {('s', 'exec')}
    if tok == 'm0': return {('s', 'm0')}
    return set()

TRANS = ('v_exp_f32', 'v_log_f32', 'v_rcp_f32', 'v_rsq_f32', 'v_sqrt_f32', 'v_sin_f32', 'v_cos_f32')

class Ins:
    def __init__(self, text):
        self.text = text
        t = text.split(';')[0].strip()
        self.label = t.endswith(':')
        self.op = t.split()[0] if t else ''
        rest = t[len(self.op):].strip()
        ops = [x.strip() for x in re.split(r',(?![^\[]*\])', rest)] if rest else []
        if ops:
            parts = ops[-1].split()
            self.mods = parts[1:]
            ops[-1] = parts[0] if parts else ''
        else:
            self.mods = []
        self.ops = ops
        op = self.op
        self.defs, self.uses = set(), set()
        self.is_mfma = op.startswith('v_mfma') or op.startswith('v_smfmac')
        self.is_valu = op.startswith('v_') and not self.is_mfma
        self.is_vmem = op.startswith('buffer_') or op.startswith('global_')
        self.is_ds = op.startswith('ds_')
        self.is_salu = op.startswith('s_')
        self.is_dot = op.startswith('v_dot')
        self.is_trans = any(op.startswith(x) for x in TRANS)
        self.is_dpp = '_dpp' in op or any(m.startswith(('row_', 'quad_perm')) for m in self.mods)
        self.is_perml = op.startswith('v_permlane')
        self.is_rl = op.startswith('v_readlane') or op.startswith('v_readfirstlane')
        R = [regs_of(o) for o in ops]
        if self.label or not op: return
        if self.is_vmem:
            store = 'store' in op or ('atomic' in op)
            lds = 'lds' in self.mods or 'load_lds' in op
            if op.startswith('buffer_'):
                if op in ('buffer_wbl2', 'buffer_inv'): return
                if lds:
                    for r in R: self.uses |= r
                elif store:
                    for r in R: self.uses |= r
                    if 'atomic' in op and 'sc0' in self.mods: self.defs |= R[0]
                    self.store_data = R[0]
                else:
                    self.defs |= R[0]
                    for r in R[1:]: self.uses |= r
            else:
                if lds:
                    for r in R: self.uses |= r
                elif 'atomic' in op and 'sc0' in self.mods:
                    self.defs |= R[0]
                    for r in R[1:]: self.uses |= r
                elif store:
                    for r in R: self.uses |= r
                    self.store_data = R[1]
                else:
                    self.defs |= R[0]
                    for r in R[1:]: self.uses |= r
        elif self.is_ds:
            if 'write' in op or 'add' in op:
                for r in R: self.uses |= r
            else:
                self.defs |= R[0]
                for r in R[1:]: self.uses |= r
        elif op.startswith('v_cmp'):
            self.defs |= R[0]
            if op.startswith('v_cmpx'): self.defs |= {('s', 'exec')}
            for r in R[1:]: self.uses |= r
        elif self.is_perml and 'swap' in op:
            self.defs |= R[0] | R[1]; self.uses |= R[0] | R[1]
        elif op.startswith('v_div_scale') or op.startswith('v_add_co') or op.startswith('v_addc_co'):
            self.defs |= R[0] | R[1]
            for r in R[2:]: self.uses |= r
        elif op.startswith('s_cmp') or op.startswith('s_cbranch') or op in ('s_waitcnt', 's_nop', 's_barrier', 's_endpgm', 's_branch', 's_sleep', 's_setprio'):
            for r in R: self.uses |= r
        else:
            if R:
                self.defs |= R[0]
                for r in R[1:]: self.uses |= r
            if op.startswith('v_fmac') or op.startswith('v_dot2c') or op.startswith('v_pk_fmac') or self.is_dpp or op.startswith('v_writelane'):
                self.uses |= R[0]
            if op.startswith('v_cndmask') and len(ops) == 3: self.uses |= {('s', 'vcc')}
            if op.startswith('v_div_fmas'): self.uses |= {('s', 'vcc')}
            if 'saveexec' in op: self.defs |= {('s', 'exec')}
        if self.is_mfma:
            self.srcA, self.srcB, self.srcC = R[1], R[2], R[3]
            if op.startswith('v_smfmac'):
                self.srcB, self.srcC = R[2] | R[3], R[0]
                self.uses |= R[0]
            if '16x16x32' in op or '16x16x16' in op or op.startswith('v_smfmac_f32_16x16x64'): self.passes, self.kind = 4, 'xdl'
            elif '32x32x16' in op or '32x32x8' in op: self.passes, self.kind = 8, 'xdl'
            elif '16x16x4_f32' in op: self.passes, self.kind = 8, 'sgemm'
            elif '32x32x2_f32' in op: self.passes, self.kind = 16, 'sgemm'
            elif '4x4x4' in op: self.passes, self.kind = 2, 'xdl'
            else: raise ValueError(op)
    def states(self):
        if self.label or not self.op: return 0
        if self.op == 's_nop': return int(self.ops[0]) + 1
        return 1

def V(s): return {x for x in s if x[0] in 'va'}
def S(s): return {x for x in s if x[0] == 's'}

def need(p, c):
    n = 0
    if p.is_valu:
        vd = V(p.defs); sd = S(p.defs)
        if c.is_mfma and vd & c.uses: n = max(n, 3 if p.is_dot else 2)
        if p.is_dot and (vd & (c.uses | c.defs)) and not c.is_mfma:
            same = (c.op == p.op)
            if same:
                ab = set()
                if c.op.startswith('v_dot2c'):
                    for o in c.ops[1:3]: ab |= regs_of(o)
                else:
                    for o in c.ops[1:3]: ab |= regs_of(o)
                if vd & ab: n = max(n, 3)
            else: n = max(n, 3)
        if p.is_trans and c.is_valu and not c.is_trans and vd & c.uses: n = max(n, 1)
        if p.is_trans and c.is_mfma and vd & c.uses: n = max(n, 2)
        if c.is_dpp and vd & c.uses: n = max(n, 2)
        if c.is_perml and vd & c.uses: n = max(n, 2)
        if c.is_rl and vd & c.uses: n = max(n, 1)
        if sd:
            if c.is_vmem and sd & c.uses: n = max(n, 5)
            if c.is_valu and (sd - {('s','exec')}) & c.uses: n = max(n, 4 if (c.op.startswith('v_div_fmas') or c.is_rl or c.op.startswith('v_writelane')) else 2)
            if c.is_salu and sd & c.uses: n = max(n, 1)
            if ('s', 'exec') in sd:
                if c.is_dpp: n = max(n, 5)
                if c.is_mfma or c.is_rl or c.is_perml: n = max(n, 4)
        if 'sdwa' in p.op and (c.is_valu) and vd & (c.uses | c.defs): n = max(n, 1)
    if p.is_salu and ('s', 'm0') in p.defs and (c.is_vmem and ('lds' in c.mods or 'load_lds' in c.op)): n = max(n, 1)
    if p.is_mfma:
        d = V(p.defs)
        idx = {2: 0, 4: 1, 8: 2, 16: 3}[p.passes]
        if c.is_mfma:
            if d & (c.srcA | c.srcB):
                n = max(n, ([5, 8, 12, 20] if p.kind == 'xdl' else [4, 6, 10, 18])[idx])
            if d & c.srcC:
                exact = (d == c.srcC and p.kind == c.kind and p.passes == c.passes)
                if exact: n = max(n, [2, 0, 0, 0][idx])
                elif p.kind == 'xdl': n = max(n, ([4, 6, 10, 18] if c.kind == 'xdl' else [3, 6, 10, 18])[idx])
                else: n = max(n, ([2, 4, 8, 16][idx] if c.kind == 'sgemm' else 0))
            elif d & V(c.defs):
                n = max(n, ([5, 8, 12, 20] if p.kind == 'xdl' else [4, 6, 10, 18])[idx])
        else:
            if d & (V(c.uses) | V(c.defs)):
                n = max(n, ([5, 8, 12, 20] if p.kind == 'xdl' else [4, 6, 10, 18])[idx])
            if p.kind == 'xdl' and c.is_valu and p.srcC & V(c.defs):
                n = max(n, [1, 3, 7, 15][idx])
    if p.is_vmem and hasattr(p, 'store_data') and ('x4' in p.op or 'x3' in p.op):
        if p.store_data & V(c.defs): n = max(n, 2)
    return n

class Prog:
    def __init__(self):
        self.ins = []
    def __call__(self, text):
        for line in text.split('\n'):
            line = line.strip()
            if line: self.ins.append(Ins(line))
    def comment(self, t):
        i = Ins(''); i.text = '; ' + t; self.ins.append(i)
    def finalize(self):
        out = []
        nops = 0
        for c in self.ins:
            if c.op and not c.label:
                dist = 0; req = 0
                for p in reversed(out):
                    if dist >= 21: break
                    if p.op and not p.label:
                        r = need(p, c) - dist
                        if r > req: req = r
                    dist += p.states()
                while req > 0:
                    k = min(req, 16)
                    out.append(Ins('s_nop %d' % (k - 1))); nops += k
                    req -= k
            out.append(c)
        self.out = out
        self.nops = nops
        return '\n'.join((i.text if (i.label or i.text.startswith(';')) else '    ' + i.text) for i in out)
```

```python
import sys, struct
from asmlib import Prog
from gen1 import *

NAME = 'standalone__linear_kernel_rfa__decode_kernel'

def main_kernel(opt):
    p = Prog()
    STAMP = opt.get('stamp', 0)
    XMAP = opt.get('xmap', 0)
    PF = opt.get('pf', 0)
    NOPOLL = opt.get('nopoll', 0)
    SIG = opt.get('sig', 0)
    DST = opt.get('dstamp', 0)
    NOCLR = opt.get('noclr', 0)
    if DST: STAMP = 1
    NT = ['', ' nt', ' sc1', ' sc1 nt', ' sc0 sc1', ' sc0 sc1 nt', ' sc0 nt', ' sc0'][opt.get('nt', 1)]
    HS = [' sc1', ' sc0 sc1'][opt.get('hs', 0)]
    vK, vOM, vV, vEPS, vONE, vW, vR = 1, 2, 3, 4, 5, 6, 7
    OM, KB, VB0, ACC, ZACC, PH, X = 8, 24, 152, 184, 216, 220, 236
    ONES, WA, PQ, vG, vC, vZERO = X, X + 4, X + 12, X + 16, X + 17, X + 18
    CONS, CLR, ZW = 0, 1, 7
    sST = 64
    def stamp(i):
        if STAMP:
            p('s_memrealtime %s' % sr(sST + 2 * i, 2)); p('s_waitcnt lgkmcnt(0)')
    p('s_cmp_ge_u32 s2, 256')
    p('s_cbranch_scc1 L_end')
    p('s_load_dwordx8 s[4:11], s[0:1], 0')
    p('s_load_dwordx4 s[12:15], s[0:1], 32')
    p('s_load_dwordx2 s[16:17], s[0:1], 48')
    if STAMP: p('s_memrealtime %s' % sr(sST, 2))
    p('v_lshrrev_b32 v1, 6, v0')
    p('v_and_b32 v0, 63, v0')
    p('v_readfirstlane_b32 s18, v1')
    if PF:
        p('s_getpc_b64 s[62:63]')
        p('v_lshlrev_b32 v%d, 7, v0' % vC)
        for i in range(PF):
            p('global_load_dword v%d, v%d, s[62:63]' % (vZERO + 1, vC))
            if i + 1 < PF: p('v_add_u32 v%d, 0x2000, v%d' % (vC, vC))
    if XMAP == 0:
        p('s_and_b32 s19, s2, 31')
        p('s_lshr_b32 s3, s2, 5')
    else:
        p('s_lshr_b32 s19, s2, 3')
        p('s_and_b32 s3, s2, 7')
    p('s_lshl_b32 s36, s19, 21')
    p('s_lshl_b32 s37, s3, 18')
    p('s_add_u32 s36, s36, s37')
    p('s_lshl_b32 s37, s18, 15')
    p('s_add_u32 s36, s36, s37')
    p('v_and_b32 v8, 15, v0')
    p('v_lshrrev_b32 v9, 4, v0')
    p('v_lshlrev_b32 v%d, 4, v9' % vG)
    p('v_lshl_add_u32 v%d, v8, 8, v%d' % (vOM, vG))
    p('v_and_b32 v11, 3, v0')
    p('v_lshlrev_b32 v11, 2, v11')
    p('v_lshrrev_b32 v12, 2, v8')
    p('v_add_u32 v11, v11, v12')
    p('v_lshl_add_u32 v%d, v11, 8, v%d' % (vK, vG))
    p('v_lshlrev_b32 v%d, 4, v0' % vV)
    for t in range(1, 8): p('s_mov_b32 s%d, %d' % (sOFF + t, 4096 * t))
    def so(t): return '0' if t == 0 else 's%d' % (sOFF + t)
    p('s_lshl_b32 s38, s19, 16')
    p('s_lshl_b32 s37, s3, 10')
    p('s_add_u32 s56, s38, s37')
    p('s_lshl_b32 s37, s3, 13')
    p('s_add_u32 s57, s38, s37')
    p('s_lshl_b32 s58, s19, 9')
    p('s_add_u32 s58, s58, 0x%x' % WS_Z)
    p('s_lshl_b32 s59, s3, 6')
    p('s_lshl_b32 s39, s19, 8')
    p('s_waitcnt lgkmcnt(0)')
    srd(p, 20, 6, 36, 32768)
    srd(p, 32, 16, 56, 65536)
    srd(p, 92, 16, 58, 512)
    p('s_cmp_lg_u32 s18, %d' % (99 if NOCLR else CLR))
    p('s_cbranch_scc1 L_noclr')
    for i in range(4): p('v_mov_b32 v%d, -1' % (ACC + i))
    for j in range(8):
        if j & 1 == 0: sj = so(j)
        p('s_mov_b32 s37, %d' % (8192 * j))
        p('buffer_store_dwordx4 %s, v%d, s[32:35], s37 offen%s' % (vr(ACC, 4), vV, HS))
    p('buffer_store_dwordx4 %s, v%d, s[92:95], s59 offen%s' % (vr(ACC, 4), vG, HS))
    p('L_noclr:')
    def loadK(t):
        for kk in range(4):
            p('buffer_load_dwordx4 %s, v%d, s[20:23], %s offen offset:%d%s' % (vr(KB + 16 * t + 4 * kk, 4), vK, so(t), 64 * kk, NT))
    def loadV(u, base):
        for j in range(8):
            p('buffer_load_dwordx4 %s, v%d, s[24:27], %s offen offset:%d%s' % (vr(base + 4 * j, 4), vV, so(2 * u + (j >> 2)), 1024 * (j & 3), NT))
    loadK(0); loadK(1)
    srd(p, 28, 10, None, 4096)
    for kk in range(4):
        p('buffer_load_dwordx4 %s, v%d, s[28:31], 0 offen offset:%d' % (vr(OM + 4 * kk, 4), vOM, 64 * kk))
    srd(p, 28, 4, 39, 256)
    for kk in range(4):
        p('buffer_load_dwordx4 %s, v%d, s[28:31], 0 offen offset:%d' % (vr(PH + 4 * kk, 4), vG, 64 * kk))
    srd(p, 24, 8, 36, 32768)
    for t in range(2, 8): loadK(t)
    loadV(0, VB0)
    consts(p)
    p('v_mov_b32 v%d, 0x%08x' % (vEPS, EPS))
    p('v_mov_b32 v%d, 1.0' % vONE)
    p('v_mov_b32 v%d, 0' % vZERO)
    p('s_lshl_b32 s37, s18, 13')
    p('v_lshlrev_b32 v%d, 7, v%d' % (X, vG))
    p('v_and_b32 v%d, 15, v0' % (X + 1))
    p('v_lshl_add_u32 v%d, v%d, 7, v%d' % (vW, X + 1, X))
    p('v_and_b32 v%d, 7, v0' % (X + 2))
    p('v_lshl_add_u32 v%d, v%d, 4, v%d' % (vW, X + 2, vW))
    p('v_add_u32 v%d, s37, v%d' % (vW, vW))
    p('s_lshl_b32 s38, s18, 1')
    p('v_lshrrev_b32 v%d, 3, v%d' % (X + 3, X + 1))
    p('v_add_u32 v%d, s38, v%d' % (X + 3, X + 3))
    p('v_lshl_add_u32 v%d, v%d, 7, v%d' % (vR, X + 3, X))
    p('v_and_b32 v%d, 7, v%d' % (X + 3, X + 3))
    p('v_xor_b32 v%d, v%d, v%d' % (X + 3, X + 3, X + 2))
    p('v_lshl_add_u32 v%d, v%d, 4, v%d' % (vR, X + 3, vR))
    for i in range(4): p('v_mov_b32 v%d, 0x3f803f80' % (ONES + i))
    for t in range(8): p('v_xor_b32 v%d, %d, v%d' % (WA + t, t << 4, vW) if t else 'v_mov_b32 v%d, v%d' % (WA, vW))
    p('s_mov_b64 s[62:63], s[14:15]')
    if SIG == 0:
        p('s_lshl_b32 s37, s19, 2')
        p('s_add_u32 s37, s37, 128')
    else:
        p('s_lshl_b32 s37, s19, 3')
    p('s_add_u32 s14, s14, s37')
    p('s_addc_u32 s15, s15, 0')
    T, SQ, P0, P1, S0, S1 = ACC, ACC + 8, ACC + 12, ACC + 16, ACC + 20, ACC + 24
    vbase = [VB0, KB, KB + 32, KB + 64]
    p('s_waitcnt vmcnt(32)')
    stamp(1)
    p('s_cmp_lg_u32 s18, %d' % CLR)
    p('s_cbranch_scc1 L_nosig')
    p('v_mov_b32 v%d, 1' % vC)
    p('s_mov_b64 exec, 1')
    if NOCLR: pass
    elif SIG == 0: p('global_atomic_add v%d, v%d, s[14:15] sc1' % (vZERO, vC))
    else:
        p('v_mov_b32 v%d, s3' % (vZERO + 1))
        p('global_store_byte v%d, v%d, s[14:15] sc1' % (vZERO + 1, vC))
    p('s_mov_b64 exec, -1')
    p('L_nosig:')
    p('s_cmp_lg_u32 s18, %d' % CONS)
    p('s_cbranch_scc1 L_noq')
    phi_q(p, PH, OM, T, SQ, PQ, S0, vONE, vEPS)
    p('L_noq:')
    for u in range(4):
        p.comment('K pair %d' % u)
        if u: p('s_waitcnt vmcnt(32)')
        a, b = KB + 32 * u, KB + 32 * u + 16
        scale_tiles(p, [a, b], T, [SQ, SQ + 1])
        for kk in range(4):
            for kb, P in ((a, P0), (b, P1)):
                p('v_mfma_f32_16x16x32_bf16 %s, %s, %s, %s' % (vr(P, 4), vr(kb + 4 * kk, 4), vr(OM + 4 * kk, 4), '0' if kk == 0 else vr(P, 4)))
        p('v_mfma_f32_16x16x4_f32 %s, v%d, v%d, 0' % (vr(S0, 4), SQ, vONE))
        p('v_mfma_f32_16x16x4_f32 %s, v%d, v%d, 0' % (vr(S1, 4), SQ + 1, vONE))
        if u < 3: loadV(u + 1, vbase[u + 1])
        exp_phase(p, [P0, P1], [S0, S1], vEPS)
        for i, P in enumerate((P0, P1)):
            p('v_cvt_pk_bf16_f32 v%d, v%d, v%d' % (PH + 4 * u + 2 * i, P, P + 1))
            p('v_cvt_pk_bf16_f32 v%d, v%d, v%d' % (PH + 4 * u + 2 * i + 1, P + 2, P + 3))
    stamp(2)
    TB = KB + 96
    for u in range(4):
        p.comment('V tile %d' % u)
        p('s_waitcnt vmcnt(%d)' % (24 - 8 * u))
        if u == 2:
            p('s_cmp_lg_u32 s18, %d' % CONS)
            p('s_cbranch_scc1 L_nochk')
            if SIG == 0: p('global_load_dword v%d, v%d, s[14:15] sc1' % (vC, vZERO))
            else: p('global_load_dwordx2 v[10:11], v%d, s[14:15] sc1' % (vZERO))
            p('L_nochk:')
        vb = vbase[u]
        p('v_mfma_f32_16x16x32_bf16 %s, %s, %s, %s' % (vr(ZACC, 4), vr(PH + 4 * u, 4), vr(ONES, 4), '0' if u == 0 else vr(ZACC, 4)))
        for w in range(4):
            tb = TB + 8 * w
            for q in range(4):
                p('v_perm_b32 v%d, v%d, v%d, s%d' % (tb + q, vb + 4 * (2 * q + 1) + w, vb + 4 * (2 * q) + w, sSELLO))
            for q in range(4):
                p('v_perm_b32 v%d, v%d, v%d, s%d' % (tb + 4 + q, vb + 4 * (2 * q + 1) + w, vb + 4 * (2 * q) + w, sSELHI))
            if w > 0:
                for b in range(2):
                    t = 2 * (w - 1) + b
                    p('v_mfma_f32_16x16x32_bf16 %s, %s, %s, %s' % (vr(ACC + 4 * t, 4), vr(PH + 4 * u, 4), vr(TB + 8 * (w - 1) + 4 * b, 4), '0' if u == 0 else vr(ACC + 4 * t, 4)))
        for b in range(2):
            t = 6 + b
            p('v_mfma_f32_16x16x32_bf16 %s, %s, %s, %s' % (vr(ACC + 4 * t, 4), vr(PH + 4 * u, 4), vr(TB + 24 + 4 * b, 4), '0' if u == 0 else vr(ACC + 4 * t, 4)))
    stamp(3)
    p('s_lshl_b32 s37, s18, 6')
    p('s_add_u32 s37, s37, 65536')
    p('v_add_u32 v9, s37, v%d' % vG)
    p('s_mov_b32 exec_lo, 0x00010001')
    p('s_mov_b32 exec_hi, 0x00010001')
    p('ds_write_b128 v9, %s' % vr(ZACC, 4))
    p('s_mov_b64 exec, -1')
    for t in range(8): p('ds_write_b128 v%d, %s' % (WA + t, vr(ACC + 4 * t, 4)))
    p('s_lshl_b32 s37, s18, 13')
    p('s_waitcnt lgkmcnt(0)')
    p('s_barrier')
    stamp(4)
    R = KB
    for w in range(8): p('ds_read_b128 %s, v%d offset:%d' % (vr(R + 4 * w, 4), vR, 8192 * w))
    p('s_cmp_lg_u32 s18, %d' % ZW)
    p('s_cbranch_scc1 L_noz')
    p('v_add_u32 v9, 65536, v%d' % vG)
    for w in range(8): p('ds_read_b128 %s, v9 offset:%d' % (vr(R + 32 + 4 * w, 4), 64 * w))
    p('s_waitcnt lgkmcnt(0)')
    for w in range(1, 8):
        for h in range(2): p('v_pk_add_f32 %s, %s, %s' % (vr(R + 32 + 2 * h, 2), vr(R + 32 + 2 * h, 2), vr(R + 32 + 4 * w + 2 * h, 2)))
    p('s_mov_b32 exec_lo, 0x00010001')
    p('s_mov_b32 exec_hi, 0x00010001')
    p('buffer_store_dwordx4 %s, v%d, s[92:95], s59 offen%s' % (vr(R + 32, 4), vG, HS))
    p('s_mov_b64 exec, -1')
    p('L_noz:')
    for w in range(1, 8):
        p('s_waitcnt lgkmcnt(%d)' % (7 - w))
        for h in range(2): p('v_pk_add_f32 %s, %s, %s' % (vr(R + 2 * h, 2), vr(R + 2 * h, 2), vr(R + 4 * w + 2 * h, 2)))
    p('buffer_store_dwordx4 %s, v%d, s[32:35], s37 offen%s' % (vr(R, 4), vV, HS))
    if NOPOLL:
        if STAMP:
            p('s_cmp_lg_u32 s18, %d' % CONS)
            p('s_cbranch_scc1 L_end')
            stamp(5)
            p('s_waitcnt vmcnt(0)')
            stamp(6)
            p('s_getreg_b32 s%d, hwreg(HW_REG_XCC_ID)' % (sST + 14))
            p('s_getreg_b32 s%d, hwreg(HW_REG_HW_ID)' % (sST + 15))
            p('s_lshl_b32 s36, s2, 6')
            p('s_add_u32 s36, s36, 0x8000000')
            srd(p, 20, 16, 36, 64)
            for i in range(16): p('v_mov_b32 v%d, s%d' % (KB + 32 + i, sST + i))
            for i in range(4): p('buffer_store_dwordx4 %s, v%d, s[20:23], 0 offen offset:%d' % (vr(KB + 32 + 4 * i, 4), vZERO, 16 * i))
        p('L_end:')
        p('s_endpgm')
        return p
    p('s_cmp_lg_u32 s18, %d' % CONS)
    p('s_cbranch_scc1 L_end')
    stamp(5)
    KV, Z, TT = KB + 32, KB + 64, KB + 96
    srd(p, 20, 16, 57, 8192)
    p('s_lshl_b32 s37, s3, 5')
    p('s_add_u32 s39, s39, s37')
    srd(p, 24, 12, 39, 32)
    p('v_lshlrev_b32 v%d, 1, v0' % vK)
    p('s_mov_b32 s38, 0x40000')
    def chk():
        if SIG == 0:
            p('v_readfirstlane_b32 s37, v%d' % vC)
            p('s_cmp_ge_u32 s37, 8')
        else:
            p('v_and_b32 v10, v10, v11')
            p('v_readfirstlane_b32 s37, v10')
            p('s_cmp_eq_u32 s37, 0x01010101')
        p('s_cbranch_scc1 L_poll')
    chk()
    p('L_spin:')
    if SIG == 0: p('global_load_dword v%d, v%d, s[14:15] sc1' % (vC, vZERO))
    else: p('global_load_dwordx2 v[10:11], v%d, s[14:15] sc1' % (vZERO))
    p('s_waitcnt vmcnt(0)')
    chk()
    p('s_sub_u32 s38, s38, 1')
    p('s_cbranch_scc0 L_spin')
    p('L_poll:')
    for s in range(8): p('buffer_load_dwordx4 %s, v%d, s[20:23], %s offen offset:%d%s' % (vr(KV + 4 * s, 4), vV, '0' if s < 4 else 's41', 1024 * (s & 3), HS))
    for s in range(8): p('buffer_load_dwordx4 %s, v%d, s[92:95], 0 offen offset:%d%s' % (vr(Z + 4 * s, 4), vG, 64 * s, HS))
    M0, M1 = TT, TT + 1
    for s in range(16):
        p('s_waitcnt vmcnt(%d)' % (15 - s))
        b = KV + 4 * s
        m = M0 + (s & 1)
        if s < 2:
            p('v_max3_u32 v%d, v%d, v%d, v%d' % (m, b, b + 1, b + 2)); p('v_max_u32 v%d, v%d, v%d' % (m, m, b + 3))
        else:
            p('v_max3_u32 v%d, v%d, v%d, v%d' % (m, m, b, b + 1)); p('v_max3_u32 v%d, v%d, v%d, v%d' % (m, m, b + 2, b + 3))
    p('v_max_u32 v%d, v%d, v%d' % (M0, M0, M1))
    p('v_cmp_eq_u32 vcc, -1, v%d' % M0)
    p('s_cbranch_vccz L_ready')
    p('s_sub_u32 s38, s38, 1')
    p('s_cbranch_scc0 L_poll')
    p('L_ready:')
    stamp(6)
    final_stage(p, KV, Z, PQ, TT, vEPS, vK, 24)
    if STAMP:
        p('s_waitcnt vmcnt(0)')
        stamp(7)
        if DST:
            p('s_mov_b64 exec, 1')
            for i in range(8):
                p('v_mov_b32 v%d, s%d' % (KV, sST + 2 * i))
                p('global_atomic_umax v%d, v%d, s[62:63] offset:%d sc1' % (vZERO, KV, 4 * i))
                p('v_not_b32 v%d, v%d' % (KV + 1, KV))
                p('global_atomic_umax v%d, v%d, s[62:63] offset:%d sc1' % (vZERO, KV + 1, 32 + 4 * i))
            p('s_mov_b64 exec, -1')
        p('s_lshl_b32 s36, s2, 6')
        p('s_add_u32 s36, s36, 0x8000000')
        srd(p, 20, 16, 36, 64)
        for i in range(16): p('v_mov_b32 v%d, s%d' % (KV + i, sST + i))
        for i in range(4): p('buffer_store_dwordx4 %s, v%d, s[20:23], 0 offen offset:%d' % (vr(KV + 4 * i, 4), vZERO, 16 * i))
    p('L_end:')
    p('s_endpgm')
    return p

def diag_kernel(opt):
    p = Prog()
    i = opt['diag']; mode = opt.get('dmode', 0)
    p('s_memrealtime s[20:21]')
    p('s_cmp_ge_u32 s2, 1')
    p('s_cbranch_scc1 L_endd')
    p('s_load_dwordx2 s[16:17], s[0:1], 48')
    p('v_lshlrev_b32 v1, 6, v0')
    p('v_mov_b32 v4, -1')
    p('v_mov_b32 v5, 0')
    p('v_mov_b32 v6, 0')
    p('ds_write_b64 v6, v[4:5]')
    p('s_waitcnt lgkmcnt(0)')
    p('s_add_u32 s16, s16, 0x8000000')
    p('s_addc_u32 s17, s17, 0')
    p('global_load_dword v2, v1, s[16:17]')
    p('global_load_dword v3, v1, s[16:17] offset:%d' % (8 * min(i, 7)))
    p('s_barrier')
    p('s_waitcnt vmcnt(0)')
    p('ds_min_u32 v6, v2')
    if 'dx' in opt:
        p('v_and_b32 v7, 7, v0')
        p('v_cmp_eq_u32 vcc, %d, v7' % opt['dx'])
        p('v_cndmask_b32 v3, v2, v3, vcc') if opt['diag'] else p('v_cndmask_b32 v3, 0, v3, vcc')
    if mode == 0: p('ds_max_u32 v6, v3 offset:4')
    else:
        p('v_not_b32 v3, v3')
        p('ds_max_u32 v6, v3 offset:4')
    p('s_waitcnt lgkmcnt(0)')
    p('s_barrier')
    p('ds_read_b64 v[4:5], v6')
    p('s_waitcnt lgkmcnt(0)')
    p('v_readfirstlane_b32 s4, v4')
    p('v_readfirstlane_b32 s5, v5')
    if mode: p('s_not_b32 s5, s5')
    if i == 8: p('s_mov_b32 s5, s20')
    p('s_sub_u32 s5, s5, s4')
    p('s_min_u32 s5, s5, 20000')
    p('s_mul_i32 s5, s5, 10')
    p('s_memrealtime s[6:7]')
    p('s_waitcnt lgkmcnt(0)')
    p('L_dspin:')
    p('s_memrealtime s[8:9]')
    p('s_waitcnt lgkmcnt(0)')
    p('s_sub_u32 s10, s8, s6')
    p('s_cmp_lt_u32 s10, s5')
    p('s_cbranch_scc1 L_dspin')
    p('L_endd:')
    p('s_endpgm')
    return p

def build(opt):
    m = main_kernel(opt)
    s = HDR
    NP = opt.get('nopoll', 0)
    if NP:
        s += '; @launch kernel=%s grid=(256,1,1) block=(512,1,1) lds=66048\n' % NAME
        s += '; @launch kernel=rfa_fin_kernel grid=(256,1,1) block=(64,1,1) lds=0\n'
    elif 'diag' in opt:
        s += '; @launch kernel=%s grid=(256,1,1) block=(512,1,1) lds=66048\n' % NAME
    else:
        s += '; @launch grid=(256,1,1) block=(512,1,1) lds=66048\n'
    if 'diag' in opt: s += '; @launch kernel=rfa_diag_kernel grid=(1,1,1) block=(256,1,1) lds=64\n'
    s += '.amdgcn_target "amdgcn-amd-amdhsa--gfx950"\n.text\n'
    s += '.globl %s\n.p2align 8\n.type %s,@function\n%s:\n' % (NAME, NAME, NAME)
    s += m.finalize() + '\n'
    if opt.get('pf', 0): s += '.fill 4096, 4, 0xbf800000\n'
    sys.stderr.write('%s: %d instr, %d nop states\n' % (NAME, len(m.out), m.nops))
    if NP:
        n = 'rfa_fin_kernel'
        s += '.globl %s\n.p2align 8\n.type %s,@function\n%s:\n' % (n, n, n) + fin_kernel(opt).finalize() + '\n'
    if 'diag' in opt:
        n = 'rfa_diag_kernel'
        s += '.globl %s\n.p2align 8\n.type %s,@function\n%s:\n' % (n, n, n) + diag_kernel(opt).finalize() + '\n'
    s += '.section .rodata,"a"\n.p2align 6\n' + kd(NAME, 256, 96)
    if 'diag' in opt: s += '.p2align 6\n' + kd('rfa_diag_kernel', 16)
    if NP: s += '.p2align 6\n' + kd('rfa_fin_kernel', 136)
    return s

if __name__ == '__main__':
    opt = dict(kv.split('=') for kv in sys.argv[2:])
    opt = {k: int(v) for k, v in opt.items()}
    open(sys.argv[1], 'w').write(build(opt))
```

```python
import sys, struct
from asmlib import Prog
from gen1 import vr, sr, srd, kd, HDR, consts, scale_tiles, exp_phase, phi_q, EPS, sMASK, sSC, sL2E, sQ25, sSELLO, sSELHI
from gen2 import diag_kernel

NAME = 'standalone__linear_kernel_rfa__decode_kernel'
WS_E = 0x80000
WS_X = 0x100000
TAGK = 0x9E3779B9
L_OM, L_Q = 4160, 4160 + 4096

def division2(p, N0, N1, Dn, T):
    R = [(N0, T, 'vcc'), (N1, T + 5, 's[58:59]')]
    for N, t, c in R: p('v_div_scale_f32 v%d, s[60:61], v%d, v%d, v%d' % (t + 1, Dn, Dn, N))
    for N, t, c in R: p('v_div_scale_f32 v%d, %s, v%d, v%d, v%d' % (t, c, N, Dn, N))
    for N, t, c in R: p('v_rcp_f32 v%d, v%d' % (t + 2, t + 1))
    for N, t, c in R: p('v_fma_f32 v%d, -v%d, v%d, 1.0' % (t + 3, t + 1, t + 2))
    for N, t, c in R: p('v_fmac_f32 v%d, v%d, v%d' % (t + 2, t + 3, t + 2))
    for N, t, c in R: p('v_mul_f32 v%d, v%d, v%d' % (t + 4, t, t + 2))
    for N, t, c in R: p('v_fma_f32 v%d, -v%d, v%d, v%d' % (t + 3, t + 1, t + 4, t))
    for N, t, c in R: p('v_fmac_f32 v%d, v%d, v%d' % (t + 4, t + 3, t + 2))
    for N, t, c in R: p('v_fma_f32 v%d, -v%d, v%d, v%d' % (t + 3, t + 1, t + 4, t))
    for N, t, c in R:
        if c != 'vcc': p('s_mov_b64 vcc, %s' % c)
        p('v_div_fmas_f32 v%d, v%d, v%d, v%d' % (t + 3, t + 3, t + 2, t + 4))
    for N, t, c in R: p('v_div_fixup_f32 v%d, v%d, v%d, v%d' % (N, t + 3, Dn, N))

def main_kernel(opt):
    p = Prog()
    STAMP = opt.get('stamp', 0)
    XMAP = opt.get('xmap', 0)
    SQM = opt.get('sqm', 1)
    FW = opt.get('fw', 1)
    PRIO = opt.get('prio', 1)
    NT = ['', ' nt'][opt.get('nt', 1)]
    PUB = opt.get('pub', 0)
    CC = opt.get('cc', 0)
    TS = opt.get('ts', 0)
    OLDS = opt.get('olds', 1)
    DUAL = opt.get('dual', 1)
    N1 = opt.get('n1', 48)
    HELP = opt.get('help', 0)
    HW = 8 - HELP
    VT = opt.get('vt', 0)
    PW = opt.get('pw', 0)
    BS = opt.get('bs', 0)
    EL = opt.get('el', 1)
    NG = opt.get('ng', 4)
    TH = opt.get('th', 0)
    HB = opt.get('hb', 0)
    WF = opt.get('wf', 0)
    PP = opt.get('pp', 1)
    ORD = opt.get('ord', 0)
    FA = opt.get('fa', 0)
    if ORD:
        assert WF == 3
        PUB = opt.get('pub', 7)
    VI = '%04d' % opt.get('vi', 0)
    DM = opt.get('dm', 0)
    NOH = opt.get('noh', 0)
    XP = opt.get('xp', 0)
    LH = opt.get('lh', 0)
    THW = opt.get('thw', 4)
    OML = opt.get('oml', 0)
    NE = opt.get('ne', 4)
    TAB = opt.get('tab', 0)
    assert not (HELP and (TAB or XMAP))
    vK, vL16, vV, vEPS, vONE, vWA, vRA = 1, 2, 3, 4, 5, 6, 7
    OM, KB, TB, ACC, ZACC, PH, X = 8, 24, 152, 184, 216, 220, 236
    ONES, PQ, vG, vT0, vT1, vDA, vW, GX = X, X + 4, X + 8, X + 9, X + 10, X + 11, X + 12, X + 16
    sST, sE, sE2 = 64, 62, 63
    def stamp(i):
        if STAMP:
            p('s_memrealtime %s' % sr(sST + 2 * i, 2)); p('s_waitcnt lgkmcnt(0)')
    p('s_load_dwordx4 s[4:7], s[0:1], 8')
    p('s_load_dwordx2 s[8:9], s[0:1], 0')
    p('s_load_dwordx4 s[12:15], s[0:1], 24')
    p('s_load_dwordx2 s[16:17], s[0:1], 48')
    if STAMP or BS: p('s_memrealtime %s' % sr(sST, 2))
    p('s_cmp_ge_u32 s2, 256')
    p('s_cbranch_scc1 L_end')
    if PRIO: p('s_setprio 3')
    p('v_lshrrev_b32 v9, 6, v0')
    p('v_and_b32 v0, 63, v0')
    if XMAP == 0:
        HM = [int(c) for c in '%05d' % opt.get('hm', 43210)][::-1]
        if HM == [0, 1, 2, 3, 4]: p('s_and_b32 s19, s2, 31')
        elif HM == [3, 4, 0, 1, 2]:
            p('s_and_b32 s19, s2, 7'); p('s_bfe_u32 s3, s2, 0x20003'); p('s_lshl2_add_u32 s19, s19, s3')
        else:
            p('s_mov_b32 s19, 0')
            for i, b in enumerate(HM):
                p('s_bfe_u32 s3, s2, 0x%x' % (0x10000 | b)); p('s_lshl_b32 s3, s3, %d' % i); p('s_or_b32 s19, s19, s3')
        p('s_lshr_b32 s3, s2, 5')
    elif XMAP == 1:
        p('s_lshr_b32 s19, s2, 3'); p('s_and_b32 s3, s2, 7')
    else:
        p('s_lshr_b32 s19, s2, 3'); p('s_xor_b32 s3, s2, s19'); p('s_and_b32 s3, s3, 7')
    p('v_readfirstlane_b32 s18, v9')
    P10 = opt.get('p10')
    if P10:
        pos = {int(c, 16): 20 - i for i, c in enumerate(P10)}
        assert sorted(pos) == list(range(1, 11)) and not HELP
        p('s_lshl_b32 s36, s19, 21')
        def place(reg, srcs):
            i = 0
            while i < 3:
                n = 1
                while i + n < 3 and pos[srcs + i + n] == pos[srcs + i] + n: n += 1
                if n == 3: p('s_lshl_b32 s37, s%d, %d' % (reg, pos[srcs]))
                else:
                    p('s_bfe_u32 s37, s%d, 0x%x' % (reg, (n << 16) | i)); p('s_lshl_b32 s37, s37, %d' % pos[srcs + i])
                p('s_or_b32 s36, s36, s37')
                i += n
        place(3, 8); place(18, 5)
        def goff(G): return sum(((G >> b) & 1) << pos[1 + b] for b in range(4))
    else:
        p('s_lshl_b32 s36, s19, 21')
        p('s_lshl_b32 s37, s3, 18')
        p('s_add_u32 s36, s36, s37')
        PERM = [int(c) for c in '%08d' % opt.get('perm', 65271340)][::-1]
        assert sorted(PERM) == list(range(8)) and PERM[0] == 0
        wpos = [10 + PERM.index(5 + i) for i in range(3)]
        if wpos[1] == wpos[0] + 1 and wpos[2] == wpos[0] + 2:
            p('v_lshlrev_b32 v%d, %d, v9' % (vW, wpos[0]))
        elif wpos[1] == wpos[0] + 1:
            p('v_lshrrev_b32 v13, 2, v9'); p('v_and_b32 v9, 3, v9')
            p('v_lshlrev_b32 v9, %d, v9' % wpos[0]); p('v_lshl_add_u32 v%d, v13, %d, v9' % (vW, wpos[2]))
        else:
            p('v_bfe_u32 v13, v9, 1, 1'); p('v_lshrrev_b32 v14, 2, v9'); p('v_and_b32 v9, 1, v9')
            p('v_lshlrev_b32 v9, %d, v9' % wpos[0]); p('v_lshl_add_u32 v9, v13, %d, v9' % wpos[1]); p('v_lshl_add_u32 v%d, v14, %d, v9' % (vW, wpos[2]))
        def goff(G):
            return sum(((2 * G >> src) & 1) << (10 + ob) for ob, src in enumerate(PERM) if src < 5)
    sofs = {0: '0'}
    for G in range(16):
        a = goff(G) & ~4095
        if a not in sofs: sofs[a] = 's%d' % ([41, 42, 43, 44, 45, 46, 47, 80, 81, 82, 83, 84, 85, 86, 87][len(sofs) - 1])
    p('v_lshrrev_b32 v10, 4, v0')
    p('v_lshlrev_b32 v%d, 4, v10' % vG)
    p('v_and_b32 v11, 1, v0')
    p('v_bfe_u32 v12, v0, 2, 2')
    p('v_lshl_add_u32 v11, v11, 2, v12')
    p('v_lshl_add_u32 v%d, v11, 8, v%d' % (vK, vG))
    p('v_bfe_u32 v12, v0, 1, 1')
    p('v_lshl_add_u32 v%d, v12, 6, v%d' % (vK, vK))
    if TAB:
        p('s_load_dwordx2 s[58:59], s[0:1], 40')
        p('s_waitcnt lgkmcnt(0)')
        p('s_load_dwordx16 s[80:95], s[58:59], 0')
        p('s_lshl_b32 s37, s18, 2'); p('s_add_u32 s37, s37, 64'); p('s_load_dword s60, s[58:59], s37')
        p('s_lshl_b32 s37, s3, 2'); p('s_add_u32 s37, s37, 96'); p('s_load_dword s61, s[58:59], s37')
        p('s_lshl_b32 s37, s19, 2'); p('s_add_u32 s37, s37, 128'); p('s_load_dword s19, s[58:59], s37')
        p('s_waitcnt lgkmcnt(0)')
        p('s_add_u32 s60, s60, s61')
        p('v_mov_b32 v%d, s60' % vW)
        p('s_lshl_b32 s36, s19, 21')
        sofs = {4096 * G: 's%d' % (80 + G) for G in range(16)}
        def goff(G): return 4096 * G
    if not P10: p('v_add_u32 v%d, v%d, v%d' % (vK, vK, vW))
    for a, r in sofs.items():
        if a and not TAB: p('s_mov_b32 %s, %d' % (r, a))
    KSZ = 0x200000 if TAB else (goff(15) + 2048 if P10 else 0x40000)
    if P10: vV = vL16
    p('v_and_b32 v8, 15, v0')
    p('v_lshlrev_b32 v%d, 4, v0' % vL16)
    p('v_lshl_add_u32 v%d, v8, 8, v%d' % (vT1, vG))
    p('s_lshl_b32 s39, s19, 8')
    p('s_mov_b32 s22, 0x%x' % KSZ)
    p('s_mov_b32 s23, 0x00020000')
    def loadKblk(u, dst, R=20):
        for G in range(4 * u, 4 * u + 4):
            for h in range(2):
                p('buffer_load_dwordx4 %s, v%d, %s, %s offen offset:%d%s' % (vr(dst + 8 * (G & 3) + 4 * h, 4), X + 13 if DM and R == 88 else vK, sr(20 if DM and R == 88 else R, 4), sofs[goff(G) & ~4095], 128 * h + (goff(G) & 4095), NT))
    def loadKg(G0, G1, R=20):
        for G in range(G0, G1):
            for h in range(2):
                p('buffer_load_dwordx4 %s, v%d, %s, %s offen offset:%d%s' % (vr(KB + 8 * G + 4 * h, 4), vK, sr(R, 4), sofs[goff(G) & ~4095], 128 * h + (goff(G) & 4095), NT))
    def loadVg(G0, G1):
        for G in range(G0, G1):
            for h in range(2):
                p('buffer_load_dwordx4 %s, v%d, %s, %s offen offset:%d%s' % (vr(KB + 8 * G + 4 * h, 4), vV, sr(24, 4), sofs[goff(G) & ~4095], 1024 * h + (goff(G) & 4095), NT))
    def loadVblk(u, dst, R=24):
        for G in range(4 * u, 4 * u + 4):
            for h in range(2):
                p('buffer_load_dwordx4 %s, v%d, %s, %s offen offset:%d%s' % (vr(dst + 8 * (G & 3) + 4 * h, 4), X + 14 if DM and R == 92 else vV, sr(24 if DM and R == 92 else R, 4), sofs[goff(G) & ~4095], 1024 * h + (goff(G) & 4095), NT))
    T, SQ, S0 = ACC, ACC + 8, ACC + 20
    RW = [TB + 6 * G for G in range(4)]
    SW_ = [ACC + 8 + 6 * G for G in range(4)]
    SQ4 = TB + 24
    def k_block(kb, ph, hook=None):
        pend = []
        for G in range(4):
            for h in range(2):
                ks = [kb + 8 * G + 4 * h + i for i in range(4)]
                for i, k in enumerate(ks): p('v_lshlrev_b32 v%d, 16, v%d' % (T + 2 * i, k))
                for i, k in enumerate(ks): p('v_and_b32 v%d, s%d, v%d' % (T + 2 * i + 1, sMASK, k))
                for x in pend: p(x)
                pend = []
                for i, k in enumerate(ks): p('v_pk_mul_f32 %s, %s, %s' % (vr(T + 2 * i, 2), vr(T + 2 * i, 2), sr(sSC, 2)))
                for i, k in enumerate(ks): p('v_cvt_pk_bf16_f32 v%d, v%d, v%d' % (k, T + 2 * i, T + 2 * i + 1))
                for i, k in enumerate(ks):
                    pend.append('v_dot2_f32_bf16 v%d, v%d, v%d, %s' % (SQ4 + G, k, k, '0' if (h == 0 and i == 0) else 'v%d' % (SQ4 + G)))
                pend.append('v_mfma_f32_16x16x32_bf16 %s, %s, %s, %s' % (vr(RW[G] + 2, 4), vr(ks[0], 4), vr(OM + 8 * h, 4), '0' if h == 0 else vr(RW[G] + 2, 4)))
                if h == 0 and G > 0:
                    g1 = G - 1
                    pend.append('v_mfma_f32_16x16x4_f32 %s, v%d, v%d, 0' % (vr(SW_[g1] + 2, 4), SQ4 + g1, vONE))
                    for hh in range(2):
                        pend.append('v_mfma_f32_16x16x32_bf16 %s, %s, %s, %s' % (vr(RW[g1], 4), vr(kb + 8 * g1 + 4 * hh, 4), vr(OM + 8 * hh + 4, 4), vr(RW[g1], 4)))
                if h == 1 and G > 0 and SQM:
                    g1 = G - 1
                    pend.append('v_mfma_f32_16x16x4_f32 %s, v%d, v%d, %s' % (vr(SW_[g1], 4), SQ4 + g1, vONE, vr(SW_[g1], 4)))
        for x in pend: p(x)
        p('v_mfma_f32_16x16x4_f32 %s, v%d, v%d, 0' % (vr(SW_[3] + 2, 4), SQ4 + 3, vONE))
        def first_round(Gs):
            for G in Gs:
                for b in range(2): p('v_cvt_pk_bf16_f32 v%d, 0, v%d' % (RW[G] + 2 + b, RW[G] + 2 + b))
            for G in Gs:
                if not SQM: p('v_pk_add_f32 %s, %s, %s' % (vr(SW_[G] + 2, 2), vr(SW_[G] + 2, 2), vr(SW_[G] + 4, 2)))
                for b in range(2): p('v_cvt_pk_bf16_f32 v%d, 0, v%d' % (SW_[G] + 2 + b, SW_[G] + 2 + b))
        first_round([0, 1])
        for hh in range(2):
            p('v_mfma_f32_16x16x32_bf16 %s, %s, %s, %s' % (vr(RW[3], 4), vr(kb + 24 + 4 * hh, 4), vr(OM + 8 * hh + 4, 4), vr(RW[3], 4)))
        if SQM: p('v_mfma_f32_16x16x4_f32 %s, v%d, v%d, %s' % (vr(SW_[3], 4), SQ4 + 3, vONE, vr(SW_[3], 4)))
        if hook: hook()
        first_round([2])
        regs = [(RW[G] + 2 + b, SW_[G] + 2 + b) for G in range(4) for b in range(2)]
        for a, b in regs[:6]: p('v_fma_f32 v%d, v%d, -0.5, v%d' % (a, b, a))
        for a, b in regs[:6]: p('v_cvt_pk_bf16_f32 v%d, 0, v%d' % (a, a))
        first_round([3])
        for a, b in regs[6:]: p('v_fma_f32 v%d, v%d, -0.5, v%d' % (a, b, a))
        for a, b in regs[6:]: p('v_cvt_pk_bf16_f32 v%d, 0, v%d' % (a, a))
        for a, b in regs: p('v_mul_f32 v%d, s%d, v%d' % (a, sL2E, a))
        for a, b in regs: p('v_exp_f32 v%d, v%d' % (a, a))
        for a, b in regs: p('v_cvt_pk_bf16_f32 v%d, 0, v%d' % (a, a))
        for a, b in regs: p('v_fma_f32 v%d, v%d, s%d, v%d' % (a, a, sQ25, vEPS))
        for G in range(4):
            p('v_cvt_pk_bf16_f32 v%d, v%d, v%d' % (ph + G, RW[G] + 2, RW[G] + 3))
    def v_block(vb, ph, first, left, fine):
        def vmf(t, tb):
            p('v_mfma_f32_16x16x32_bf16 %s, %s, %s, %s' % (vr(ACC + 4 * t, 4), vr(ph, 4), vr(tb, 4), '0' if first else vr(ACC + 4 * t, 4)))
        def prm(w, q, hi):
            p('v_perm_b32 v%d, v%d, v%d, s%d' % (TB + 8 * w + 4 * hi + q, vb + 4 * (2 * q + 1) + w, vb + 4 * (2 * q) + w, sSELHI if hi else sSELLO))
        if fine:
            for q in range(4):
                p('s_waitcnt vmcnt(%d)' % (left + 6 - 2 * q))
                for w in range(4):
                    prm(w, q, 0); prm(w, q, 1)
                    if q == 3 and w > 0:
                        for b in range(2): vmf(2 * (w - 1) + b, TB + 8 * (w - 1) + 4 * b)
        else:
            if left is not None: p('s_waitcnt vmcnt(%d)' % left)
            for w in range(4):
                for hi in range(2):
                    for q in range(4): prm(w, q, hi)
                if w > 0:
                    for b in range(2): vmf(2 * (w - 1) + b, TB + 8 * (w - 1) + 4 * b)
        for b in range(2): vmf(6 + b, TB + 24 + 4 * b)
    def den_fold(nb, Dn, D2):
        for u in range(nb):
            p('v_mfma_f32_16x16x32_bf16 %s, %s, %s, %s' % (vr(ZACC, 4), vr(PH + 4 * u, 4), vr(ONES, 4), '0' if u == 0 else vr(ZACC, 4)))
        p('v_mul_f32 v%d, v%d, v%d' % (Dn, PQ, ZACC))
        for r in range(1, 4): p('v_fmac_f32 v%d, v%d, v%d' % (Dn, PQ + r, ZACC + r))
        for sw in ('v_permlane32_swap_b32', 'v_permlane16_swap_b32'):
            p('v_mov_b32 v%d, v%d' % (D2, Dn))
            p('%s v%d, v%d' % (sw, Dn, D2))
            p('v_add_f32 v%d, v%d, v%d' % (Dn, Dn, D2))
    def num_fold(N):
        for t in range(8):
            p('v_mul_f32 v%d, v%d, v%d' % (N + t, PQ, ACC + 4 * t))
            for r in range(1, 4): p('v_fmac_f32 v%d, v%d, v%d' % (N + t, PQ + r, ACC + 4 * t + r))
        for t in range(4): p('v_permlane32_swap_b32 v%d, v%d' % (N + t, N + t + 4))
        for t in range(4): p('v_add_f32 v%d, v%d, v%d' % (N + t, N + t, N + t + 4))
        for t in range(2): p('v_permlane16_swap_b32 v%d, v%d' % (N + t, N + t + 2))
        for t in range(2): p('v_add_f32 v%d, v%d, v%d' % (N + t, N + t, N + t + 2))
    def setup_consts():
        consts(p)
        p('v_mov_b32 v%d, 0x%08x' % (vEPS, EPS))
        p('v_mov_b32 v%d, 1.0' % vONE)
        if WF != 3:
            for i in range(4): p('v_mov_b32 v%d, 0x3f803f80' % (ONES + i))
    def eload(addr=True, load=True):
        if addr:
            p('s_lshl_b32 s37, s19, 7')
            p('s_add_u32 s37, s37, 0x%x' % WS_E)
            p('s_add_u32 s10, s16, s37')
            p('s_addc_u32 s11, s17, 0')
        if load: p('s_load_dword s%d, s[10:11], 0 glc' % sE)
    R3K, R3V, RX = (88, 92, 96) if HELP or LH else (20, 24, 96)
    if LH:
        assert P10 and not OLDS and not HELP and not XMAP and 'hm' not in opt
        HW = 8 - LH
    def help_setup():
        p('s_and_b32 s37, s2, 1')
        p('s_lshl_b32 s37, s37, 3')
        p('s_add_u32 s40, s37, s18')
        p('s_cmp_ge_u32 s40, %d' % (8 + HW))
        p('s_cselect_b32 s%d, 0, 0x%x' % (R3K + 2, KSZ))
        p('s_mov_b32 s%d, s20' % R3K); p('s_mov_b32 s%d, s21' % (R3K + 1)); p('s_mov_b32 s%d, s23' % (R3K + 3))
    def xaddr(plus):
        p('s_lshl_b32 s37, s2, 3')
        p('s_add_u32 s37, s37, s18')
        p('s_lshl_b32 s37, s37, 10')
        p('s_add_u32 s37, s37, 0x%x' % (WS_X + plus))
        srd(p, RX, 16, 37, 1024)
    def helper():
        p('s_sub_u32 s37, s40, %d' % HW)
        p('s_cmp_ge_u32 s37, %d' % HELP)
        p('s_cbranch_scc1 L_nohelp')
        if OLDS < 2: p('s_load_dword s%d, s[10:11], 128 glc' % sE2)
        if not OLDS:
            p('s_add_u32 s37, s39, 256')
            srd(p, 32, 8, 37, 256)
            for kk in range(4): p('buffer_load_dwordx4 %s, v%d, s[32:35], 0 offen offset:%d' % (vr(PH + 4 * kk, 4), vG, 64 * kk))
        def hloads():
            p('v_add_u32 v%d, v%d, v%d' % (vV, vL16, vW))
            p('s_add_u32 s37, s36, 0x200000')
            srd(p, 24, 4, 37, KSZ)
            loadKblk(3, KB, 24)
            srd(p, 24, 6, 37, KSZ)
            loadVblk(3, KB + 32, 24)
        if OLDS == 2 and HB:
            hloads()
            share(16)
            p('s_barrier')
        elif OLDS == 2:
            share(0)
            p('s_barrier')
            hloads()
        else: hloads()
        if OLDS == 2 and PRIO: p('s_setprio 2')
        setup_consts()
        xaddr(8192)
        if OLDS:
            if OLDS == 1:
                p('s_waitcnt lgkmcnt(0)')
                p('s_barrier')
            for kk in range(4): p('ds_read_b128 %s, v%d offset:%d' % (vr(OM + 4 * kk, 4), vL16, L_OM + 1024 * kk))
            for kk in range(4): p('ds_read_b128 %s, v%d offset:%d' % (vr(PH + 4 * kk, 4), vG, L_Q + 256 + 64 * kk))
        p('s_waitcnt lgkmcnt(0)')
        if OLDS == 2: p('s_load_dword s%d, s[10:11], 128 glc' % sE2)
        else: p('s_add_u32 s%d, s%d, 0x%08x' % (sE2, sE2, TAGK))
        if not OLDS: p('s_waitcnt vmcnt(16)')
        phi_q(p, PH, OM, T, SQ, PQ, S0, vONE, vEPS)
        p('s_waitcnt vmcnt(8)')
        k_block(KB, PH)
        den_fold(1, GX + 2, vT1)
        v_block(KB + 32, PH, True, 0, False)
        num_fold(KB)
        if OLDS == 2:
            p('s_waitcnt lgkmcnt(0)')
            p('s_add_u32 s%d, s%d, 0x%08x' % (sE2, sE2, TAGK))
        p('v_mov_b32 v%d, s%d' % (GX + 3, sE2))
        p('v_mov_b32 v%d, v%d' % (GX, KB))
        p('v_mov_b32 v%d, v%d' % (GX + 1, KB + 1))
        p('buffer_store_dwordx4 %s, v%d, %s, 0 offen sc1' % (vr(GX, 4), vL16, sr(RX, 4)))
        if OLDS == 1: p('s_branch L_kload')
        if OLDS == 2: p('s_branch L_kl2')
        p('L_nohelp:')
    def share(left):
        p('s_waitcnt vmcnt(%d)' % (left + 1))
        p('ds_write_b128 v%d, %s' % (vT0, vr(OM, 4)))
        p('s_waitcnt vmcnt(%d)' % left)
        p('ds_write_b128 v%d, %s offset:%d' % (vL16, vr(OM + 4, 4), L_Q))
        p('s_waitcnt lgkmcnt(0)')
    if OLDS >= 2:
        assert not (HELP and (OLDS == 3 or NG > 12))
        def fetch():
            srd(p, 28, 12, None, 4096)
            p('buffer_load_dwordx4 %s, v%d, s[28:31], s38 offen' % (vr(OM, 4), vT1))
            if HELP:
                p('s_and_b32 s37, s39, 0xfffffe00')
                srd(p, 32, 8, 37, 512)
            else: srd(p, 32, 8, 39, 256)
            p('buffer_load_dwordx4 %s, v%d, s[32:35], 0 offen' % (vr(OM + 4, 4), vL16))
        p('s_and_b32 s37, s18, 3')
        p('s_lshl_b32 s38, s37, 6')
        p('s_lshl_b32 s37, s37, 10')
        p('s_add_u32 s37, s37, %d' % L_OM)
        p('v_add_u32 v%d, s37, v%d' % (vT0, vL16))
        p('s_cmp_ge_u32 s18, 4')
        p('s_cbranch_scc1 L_late')
        if PRIO and OLDS == 2: p('s_setprio 2')
        p('s_waitcnt lgkmcnt(0)')
        p('s_add_u32 s20, s4, s36')
        p('s_addc_u32 s21, s5, 0')
        if OLDS == 3: fetch()
        loadKg(0, NG)
        if OLDS == 3: share(2 * NG)
        eload(True, False)
        if HELP: help_setup()
        p('s_barrier')
        p('s_branch L_join')
        p('L_late:')
        p('s_waitcnt lgkmcnt(0)')
        if OLDS == 2: fetch()
        p('s_add_u32 s20, s4, s36')
        p('s_addc_u32 s21, s5, 0')
        eload(True, False)
        if HELP:
            help_setup(); helper()
        if OLDS == 2:
            if PRIO: p('s_setprio 2')
            share(0)
        p('s_barrier')
        if HELP: p('L_kl2:')
        loadKg(0, NG)
        p('L_join:')
        loadKg(NG, 12)
        loadKg(max(NG, 12), 16, R3K)
        if PRIO: p('s_setprio 0')
        if HELP:
            p('s_and_b32 s37, s39, 256')
            p('v_add_u32 v%d, s37, v%d' % (vT0, vG))
        for kk in range(4): p('ds_read_b128 %s, v%d offset:%d' % (vr(OM + 4 * kk, 4), vL16, L_OM + 1024 * kk))
        for kk in range(4): p('ds_read_b128 %s, v%d offset:%d' % (vr(PH + 4 * kk, 4), vT0 if HELP else vG, L_Q + 64 * kk))
    elif OLDS:
        p('s_lshl_b32 s38, s18, 6')
        p('s_and_b32 s37, s39, 0xfffffe00')
        p('s_cmp_lt_u32 s18, 4')
        p('s_cselect_b32 s30, 0x1000, 0')
        p('s_cselect_b64 vcc, -1, 0')
        p('s_cmp_eq_u32 s18, 4')
        p('s_cselect_b32 s30, 0x200, s30')
        p('s_cselect_b32 s38, 0, s38')
        p('s_mov_b32 s31, 0x00020000')
        p('v_cndmask_b32 v%d, v%d, v%d, vcc' % (vT1, vL16, vT1))
        p('s_waitcnt lgkmcnt(0)')
        p('s_add_u32 s8, s8, s37')
        p('s_addc_u32 s9, s9, 0')
        p('s_cmp_lt_u32 s18, 4')
        p('s_cselect_b32 s28, s12, s8')
        p('s_cselect_b32 s29, s13, s9')
        p('s_add_u32 s20, s4, s36')
        p('s_addc_u32 s21, s5, 0')
        p('buffer_load_dwordx4 %s, v%d, s[28:31], s38 offen' % (vr(OM, 4), vT1))
        eload(True, not EL)
        if HELP: help_setup()
        p('s_min_u32 s37, s18, 5')
        p('s_lshl_b32 s37, s37, 10')
        p('s_add_u32 s37, s37, %d' % L_OM)
        p('v_add_u32 v%d, s37, v%d' % (vT0, vL16))
        p('s_cmp_lt_u32 s18, %d' % NE)
        p('s_cbranch_scc1 L_kload')
        p('s_waitcnt vmcnt(0)')
        p('ds_write_b128 v%d, %s' % (vT0, vr(OM, 4)))
        if HELP:
            helper()
        p('s_waitcnt lgkmcnt(0)')
        p('s_barrier')
        p('L_kload:')
        for u in range(4): loadKblk(u, KB + 32 * u, R3K if u == 3 else 20)
        if PRIO: p('s_setprio 0')
        p('s_cmp_ge_u32 s18, %d' % NE)
        p('s_cbranch_scc1 L_shared')
        p('s_waitcnt vmcnt(32)')
        p('ds_write_b128 v%d, %s' % (vT0, vr(OM, 4)))
        p('s_waitcnt lgkmcnt(0)')
        p('s_barrier')
        p('L_shared:')
        p('s_lshl_b32 s37, s19, 8')
        p('s_and_b32 s37, s37, 256')
        p('v_add_u32 v%d, s37, v%d' % (vT0, vG))
        for kk in range(4): p('ds_read_b128 %s, v%d offset:%d' % (vr(OM + 4 * kk, 4), vL16, L_OM + 1024 * kk))
        for kk in range(4): p('ds_read_b128 %s, v%d offset:%d' % (vr(PH + 4 * kk, 4), vT0, L_Q + 64 * kk))
    else:
        p('s_waitcnt lgkmcnt(0)')
        p('s_add_u32 s20, s4, s36')
        p('s_addc_u32 s21, s5, 0')
        for u in range(OML): loadKblk(u, KB + 32 * u)
        srd(p, 28, 12, None, 4096)
        for kk in range(4): p('buffer_load_dwordx4 %s, v%d, s[28:31], 0 offen offset:%d' % (vr(OM + 4 * kk, 4), vT1, 64 * kk))
        if HELP:
            eload(); help_setup(); helper()
        srd(p, 32, 8, 39, 256)
        for kk in range(4): p('buffer_load_dwordx4 %s, v%d, s[32:35], 0 offen offset:%d' % (vr(PH + 4 * kk, 4), vG, 64 * kk))
        if not HELP: eload()
        if LH:
            p('s_load_dword s%d, s[10:11], 128 glc' % sE2)
            help_setup()
            if DM:
                p('s_cselect_b32 s49, 0, -1')
                p('v_and_b32 v%d, s49, v%d' % (X + 13, vK))
                p('v_and_b32 v%d, s49, v%d' % (X + 14, vL16))
        if VT & 96:
            p('s_cmp_lg_u32 s18, %d' % PUB)
            p('s_cbranch_scc1 L_notouch')
            if VT & 32:
                p('s_lshl_b32 s37, s19, 14')
                p('v_mov_b32 v%d, s37' % (X + 13))
                p('global_load_dword v%d, v%d, s[16:17] offset:%d' % (X + 13, X + 13, 1024 * CC))
            if VT & 64:
                p('v_mov_b32 v%d, s39' % (X + 14))
                p('global_load_dword v%d, v%d, s[14:15]' % (X + 14, X + 14))
            p('L_notouch:')
        for u in range(OML, 4):
            loadKblk(u, KB + 32 * u, R3K if u == 3 else 20)
            if BS == 2: p('s_memrealtime %s' % sr(sST + 2 + 2 * u, 2))
        if PRIO: p('s_setprio 0')
    if not P10: p('v_add_u32 v%d, v%d, v%d' % (vV, vL16, vW))
    srd(p, 24, 6, 36, KSZ)
    if VT & 2: p('s_load_dword s59, s[24:25], 0')
    setup_consts()
    if LH:
        p('s_mov_b32 s%d, s24' % R3V); p('s_mov_b32 s%d, s25' % (R3V + 1)); p('s_mov_b32 s%d, s%d' % (R3V + 2, R3K + 2)); p('s_mov_b32 s%d, s27' % (R3V + 3))
        if XP:
            p('s_lshl_b32 s37, s2, 3')
            p('s_xor_b32 s38, s18, 7')
            p('s_add_u32 s37, s37, s38')
            p('s_lshl_b32 s37, s37, 10')
            p('s_add_u32 s37, s37, 0x%x' % WS_X)
            srd(p, RX, 16, 37, 1024)
        p('s_cmp_ge_u32 s40, %d' % (8 + HW))
        p('s_cselect_b32 s49, 0, -1')
        if XP:
            p('s_cselect_b32 s%d, 1024, 0' % (RX + 2))
            p('s_xor_b32 s37, s40, 15')
            p('s_min_u32 s40, s40, s37')
    if HELP:
        p('s_mov_b32 s%d, s24' % R3V); p('s_mov_b32 s%d, s25' % (R3V + 1)); p('s_mov_b32 s%d, s%d' % (R3V + 2, R3K + 2)); p('s_mov_b32 s%d, s27' % (R3V + 3))
        xaddr(0)
        p('s_cmp_ge_u32 s40, %d' % (8 + HW))
        p('s_cselect_b32 s%d, 1024, 0' % (RX + 2))
        p('s_cselect_b32 s49, 0, -1')
    vS0, vS1, vE0 = X + 13, X + 14, X + 15
    if WF == 3:
        assert not (HELP or LH or VT or OLDS or TH or int(VI))
        SEL, vDA, vDS, vIX = X + 8, X + 14, X + 15, vK
        vS0, vS1 = SEL + 2, SEL + 3
        p('s_lshl_b32 s37, s18, 9')
        if ORD: p('v_lshl_add_u32 v%d, v0, 3, s37' % vWA)
        else:
            p('v_and_b32 v%d, 15, v0' % vWA)
            p('v_bfe_u32 v%d, v0, 4, 1' % vDS)
            p('v_lshl_add_u32 v%d, v%d, 1, v%d' % (vWA, vWA, vDS))
            p('v_lshl_add_u32 v%d, v%d, 4, s37' % (vWA, vWA))
        p('v_bfe_u32 v%d, v0, 3, 1' % vS0)
        p('v_lshlrev_b32 v%d, 4, v%d' % (vS0, vS0))
        p('s_movk_i32 s37, 0x3f80')
        p('v_lshlrev_b32 v%d, v%d, s37' % (vS0, vS0))
        p('v_bfe_u32 v%d, v0, 2, 1' % vS1)
        p('v_and_b32 v%d, 1, v0' % vDS)
        p('v_lshl_add_u32 v%d, v%d, 1, v%d' % (vS1, vS1, vDS))
        p('v_lshrrev_b32 v%d, 4, v0' % vDS)
        p('v_cmp_eq_u32 vcc, v%d, v%d' % (vS1, vDS))
        p('v_cndmask_b32 v%d, 0, v%d, vcc' % (vS0, vS0))
        p('v_and_b32 v%d, 2, v0' % vDS)
        p('v_cmp_eq_u32 vcc, 0, v%d' % vDS)
        p('v_cndmask_b32 v%d, v%d, 0, vcc' % (vS1, vS0))
        p('v_cndmask_b32 v%d, 0, v%d, vcc' % (vS0, vS0))
        for i in (0, 1, 4, 5): p('v_mov_b32 v%d, 0' % (SEL + i))
        if ORD:
            p('v_lshrrev_b32 v%d, 2, v0' % vIX)
            p('v_and_b32 v%d, 2, v%d' % (vIX, vIX))
            p('v_bitop3_b32 v%d, v%d, v0, 3 bitop3:0x28' % (vIX, vIX))
        else: p('v_and_b32 v%d, 3, v0' % vIX)
        p('v_mul_u32_u24 v%d, 0x5555, v%d' % (vIX, vIX))
    elif WF:
        assert not (HELP or LH or VT & 124)
        p('v_lshlrev_b32 v%d, 5, v0' % vWA)
        p('s_lshl_b32 s37, s18, 9')
        p('v_add_u32 v%d, s37, v%d' % (vWA, vWA))
        p('v_and_b32 v%d, 1, v0' % vS0)
        p('v_lshlrev_b32 v%d, 4, v%d' % (vS0, vS0))
        p('s_movk_i32 s37, 0x3f80')
        p('v_lshlrev_b32 v%d, v%d, s37' % (vS0, vS0))
        p('v_bfe_u32 v%d, v0, 2, 2' % vS1)
        p('v_lshrrev_b32 v%d, 4, v0' % vE0)
        p('v_cmp_eq_u32 vcc, v%d, v%d' % (vS1, vE0))
        p('v_cndmask_b32 v%d, 0, v%d, vcc' % (vS0, vS0))
        p('v_and_b32 v%d, 2, v0' % vE0)
        p('v_cmp_eq_u32 vcc, 0, v%d' % vE0)
        p('v_cndmask_b32 v%d, v%d, 0, vcc' % (vS1, vS0))
        p('v_cndmask_b32 v%d, 0, v%d, vcc' % (vS0, vS0))
        p('v_and_b32 v%d, 15, v0' % vE0)
        p('v_cmp_eq_u32 vcc, 0, v%d' % vE0)
        p('v_cndmask_b32 v%d, 0, 1.0, vcc' % vE0)
    else:
        p('v_and_b32 v%d, 15, v0' % vWA)
        p('v_lshlrev_b32 v%d, 6, v%d' % (vWA, vWA))
        p('v_add_u32 v%d, v%d, v%d' % (vWA, vWA, vG))
        p('v_lshrrev_b32 v%d, 1, v%d' % (vWA, vWA))
        p('s_lshl_b32 s37, s18, 9')
        p('v_add_u32 v%d, s37, v%d' % (vWA, vWA))
    p('s_lshl_b32 s56, s19, 14')
    srd(p, 28, 16, 56, 16384)
    p('s_lshl_b32 s57, s3, 10')
    srd(p, 32, 14, 39, 256)
    p('v_lshlrev_b32 v%d, 3, v0' % vRA)
    p('s_lshl_b32 s37, s18, 2')
    p('s_add_u32 s37, s37, 4096')
    p('v_mov_b32 v%d, s37' % vDA)
    vbase = [KB + 32 * u for u in range(4)]
    NTOUCH = 0
    if VT & 28: p('v_mov_b32 v%d, 0' % vT0)
    if VT & 4:
        p('buffer_load_dword v%d, v%d, s[28:31], 0 offen offset:%d' % (X + 13, vT0, 1024 * CC)); NTOUCH += 1
    if VT & 8:
        p('buffer_load_dword v%d, v%d, s[32:35], 0 offen' % (X + 14, vT0)); NTOUCH += 1
    if VT & 16:
        p('buffer_load_dword v%d, v%d, s[24:27], 0 offen' % (X + 15, vW)); NTOUCH += 1
    p('s_waitcnt lgkmcnt(0)' if OLDS else 's_waitcnt vmcnt(%d)' % (32 - 8 * OML + NTOUCH))
    if OLDS >= 2 or (OLDS and EL): eload(False, True)
    if not TS: stamp(1)
    phi_q(p, PH, OM, T, SQ, PQ, S0, vONE, vEPS)
    def vissue():
        if HELP: p('buffer_load_dwordx4 %s, v%d, %s, 0 offen sc1' % (vr(GX, 4), vL16, sr(RX, 4)))
        if TH:
            p('s_and_b32 s37, s2, 1')
            p('s_lshl_b32 s37, s37, 3')
            p('s_add_u32 s37, s37, s18')
            p('s_sub_u32 s37, s37, %d' % THW)
            p('s_cmp_ge_u32 s37, %d' % (8 - THW))
            p('s_cbranch_scc1 L_vfree')
            n = 0
            for G in range(16):
                for h in range(2):
                    if n >= TH: p('s_waitcnt vmcnt(%d)' % (TH - 1))
                    p('buffer_load_dwordx4 %s, v%d, %s, %s offen offset:%d%s' % (vr(KB + 8 * G + 4 * h, 4), vV, sr(24, 4), sofs[goff(G) & ~4095], 1024 * h + (goff(G) & 4095), NT))
                    n += 1
            p('s_branch L_vdone')
            p('L_vfree:')
        for uu in range(4):
            if XP == uu + 1: p('buffer_load_dwordx4 %s, v%d, %s, 0 offen sc1' % (vr(GX, 4), vL16, sr(RX, 4)))
            loadVblk(uu, vbase[uu], R3V if uu == 3 else 24)
            if BS == 2: p('s_memrealtime %s' % sr(sST + 10 + 2 * uu, 2))
        if TH: p('L_vdone:')
    def weights(P3):
        p.comment('w[k] = sum_m phi_q[m] phi[m][k], as a high and a low bf16 row')
        SL, T0, U0, BM, BE = TB, TB + 8, TB + 16, TB + 24, TB + 25
        for i, r in enumerate((None, None, vS0, vS1, None, None)): p('v_mov_b32 v%d, %s' % (SL + i, 'v%d' % r if r else '0'))
        p('v_and_b32 v%d, 15, v0' % BE)
        p('v_cmp_eq_u32 vcc, 1, v%d' % BE)
        p('v_mfma_f32_16x16x32_bf16 %s, %s, %s, 0' % (vr(T0, 4), vr(P3, 4), vr(SL + 2, 4)))
        p('v_mfma_f32_16x16x32_bf16 %s, %s, %s, 0' % (vr(T0 + 4, 4), vr(P3, 4), vr(SL, 4)))
        p('v_cndmask_b32 v%d, 0, 1.0, vcc' % BE)
        p('v_add_f32 v%d, v%d, v%d' % (BM, BE, vE0))
        for r in range(4):
            for sx in range(2):
                p('%s v%d, v%d, v%d' % ('v_fmac_f32' if r else 'v_mul_f32', SL + sx, PQ + r, T0 + 4 * sx + r))
        for sx in range(2): p('v_mfma_f32_16x16x4_f32 %s, v%d, v%d, 0' % (vr(U0 + 4 * sx, 4), SL + sx, BM))
        for q in range(4): p('v_cvt_pk_bf16_f32 v%d, v%d, v%d' % (P3 + q, U0 + 2 * q, U0 + 2 * q + 1))
        for q in range(4):
            p('v_lshlrev_b32 v%d, 16, v%d' % (T0 + 2 * q, P3 + q))
            p('v_and_b32 v%d, s%d, v%d' % (T0 + 2 * q + 1, sMASK, P3 + q))
        for i in range(8): p('v_fma_f32 v%d, -v%d, v%d, v%d' % (U0 + i, BE, T0 + i, U0 + i))
        for q in range(4): p('v_cvt_pk_bf16_f32 v%d, v%d, v%d' % (P3 + q, U0 + 2 * q, U0 + 2 * q + 1))
    WREG = [[PH + i for i in range(8)], [PH + 8 + i for i in range(4)] + [ZACC + i for i in range(4)],
            [ONES + i for i in range(4)] + [GX + i for i in range(4)], [TB + 24 + i for i in range(8)]]
    AREG = [ACC, ACC + 16, OM, TB]
    A4 = PH + 12
    def expand(u, lo=0, hi=8):
        for i in range(lo, hi):
            w = WREG[u][i]
            p('v_pk_mul_f32 %s, %s, %s op_sel:[%d,0] op_sel_hi:[%d,1]' % (vr(AREG[u] + 2 * i, 2), vr(w & ~1, 2), vr(SEL, 2), w & 1, w & 1))
    def weights3(u):
        p.comment('w[k] = sum_m phi_q[m] phi[m][k], as a (low, high) bf16 pair per key')
        P3, SL, T0, U0 = PH + 12, TB, TB + 8, TB + 16
        p('v_mfma_f32_16x16x32_bf16 %s, %s, %s, 0' % (vr(T0, 4), vr(P3, 4), vr(SEL + 2, 4)))
        p('v_mfma_f32_16x16x32_bf16 %s, %s, %s, 0' % (vr(T0 + 4, 4), vr(P3, 4), vr(SEL, 4)))
        if u == 3:
            p('v_and_b32 v%d, 4, v0' % SL)
            p('v_cmp_eq_u32 vcc, 0, v%d' % SL)
            p('v_cndmask_b32 v%d, 0, 1.0, vcc' % SEL)
            p('v_cndmask_b32 v%d, 1.0, 0, vcc' % (SEL + 1))
            expand(0, 0, 4)
        for r in range(4):
            for sx in range(2):
                p('%s v%d, v%d, v%d' % ('v_fmac_f32' if r else 'v_mul_f32', SL + sx, PQ + r, T0 + 4 * sx + r))
        if u: p('v_add_f32 v%d, v%d, v%d' % (vDS, vDS, SL))
        p('v_add_f32 v%d, v%d, v%d' % (vDS, vDS if u else SL, SL + 1))
        for sx in range(2): p('v_mfma_f32_16x16x4_f32 %s, v%d, v%d, 0' % (vr(U0 + 4 * sx, 4), SL + sx, vONE))
        if u == 3:
            expand(0, 4, 8); expand(1)
            p('v_mfma_f32_16x16x4_f32 %s, v%d, v%d, 0' % (vr(ZACC, 4), vDS, vONE))
        for i in range(8): p('v_cvt_pk_bf16_f32 v%d, 0, v%d' % (T0 + i, U0 + i))
        for i in range(0, 8, 2): p('v_pk_add_f32 %s, %s, %s neg_lo:[0,1] neg_hi:[0,1]' % (vr(T0 + i, 2), vr(U0 + i, 2), vr(T0 + i, 2)))
        for i in range(8): p('v_cvt_pk_bf16_f32 v%d, v%d, v%d' % (WREG[u][i], T0 + i, U0 + i))
    sched = [2 * int(c) for c in VI] if int(VI) else None
    if sched:
        assert sum(sched) == 16 and not (HELP or LH or TH or BS)
        cum = [sum(sched[:i + 1]) for i in range(4)]
        def vissue(): loadVg(0, cum[0])
    if ORD:
        vissue0 = vissue
        def vissue():
            p('s_cmp_eq_u32 s18, %d' % PUB)
            p('s_cbranch_scc1 L_vlater')
            vissue0()
            if not FA:
                p('s_cmp_lt_u32 s18, 4')
                p('s_cbranch_scc1 L_vlater')
            p('s_barrier')
            p('L_vlater:')
    for u in range(4):
        p.comment('K block %d' % u)
        p('s_waitcnt vmcnt(%d)' % (24 - 8 * u + NTOUCH))
        if BS == 1: p('s_memrealtime %s' % sr(sST + 2 + 2 * u, 2))
        k_block(KB + 32 * u, PH + 12 if WF == 3 else PH + 4 * u, vissue if u == 3 else None)
        if WF == 2: weights(PH + 4 * u)
        if WF == 3: weights3(u)
    if HELP or LH:
        for G in range(4): p('v_and_b32 v%d, s49, v%d' % (PH + 12 + G, PH + 12 + G))
    if not TS: stamp(2)
    Dn, D2 = vT0, vT1
    if WF == 2:
        for u in range(4):
            p('v_mfma_f32_16x16x32_bf16 %s, %s, %s, %s' % (vr(ZACC, 4), vr(PH + 4 * u, 4), vr(ONES, 4), '0' if u == 0 else vr(ZACC, 4)))
        p('v_add_f32 v%d, v%d, v%d' % (Dn, ZACC, ZACC + 1))
    elif WF == 3:
        p('v_pk_add_f32 %s, %s, %s' % (vr(ZACC, 2), vr(ZACC, 2), vr(ZACC + 2, 2)))
        for i in range(4): p('v_mov_b32 v%d, 0' % (A4 + i))
        p('v_add_f32 v%d, v%d, v%d' % (vDS, ZACC, ZACC + 1))
        expand(2, 0, 2)
        p('v_mfma_f32_16x16x4_f32 %s, v%d, v%d, 0' % (vr(ZACC, 4), vDS, vONE))
        expand(2, 2, 8); expand(3)
        Dn = ZACC
    else: den_fold(4, Dn, D2)
    p('s_waitcnt lgkmcnt(0)')
    p('s_add_u32 s%d, s%d, 0x%08x' % (sE, sE, TAGK))
    def den_write():
        p('s_mov_b64 exec, 1')
        p('ds_write_b32 v%d, v%d' % (vDA, Dn))
        p('s_mov_b64 exec, -1')
    def vphase():
        for u in range(4):
            p.comment('V block %d' % u)
            for q in range(4):
                p('s_waitcnt vmcnt(%d)' % (30 - 8 * u - 2 * q))
                p('v_smfmac_f32_16x16x64_bf16 %s, %s, %s, v%d' % (vr(A4, 4), vr(AREG[u] + 4 * q, 4), vr(vbase[u] + 8 * q, 8), vIX))
            if BS == 1: p('s_memrealtime %s' % sr(sST + 10 + 2 * u, 2))
    if ORD:
        assert not BS
        p('s_cmp_eq_u32 s18, %d' % PUB)
        den_write()
        p('s_cbranch_scc1 L_last')
        vphase()
        p('ds_write_b64 v%d, %s' % (vWA, vr(A4, 2)))
        p('s_waitcnt lgkmcnt(0)')
        p('s_endpgm')
        p('L_last:')
        GA = A4 - 2
        R, ZR = TB + 16, PH
        oth = [w for w in range(8) if w != PUB]
        p('v_mov_b32 v%d, 0' % D2)
        p('v_mov_b32 v%d, s%d' % (GA + 1, sE))
        p('s_add_u32 s38, s57, 8192')
        p('v_and_b32 v%d, 15, v0' % vWA)
        p('v_bfe_u32 v%d, v0, 4, 1' % R)
        p('v_lshl_add_u32 v%d, v%d, 1, v%d' % (vWA, vWA, R))
        p('v_lshrrev_b32 v%d, 5, v0' % R)
        p('v_lshl_add_u32 v%d, v%d, 1, v%d' % (vWA, vWA, R))
        p('v_lshlrev_b32 v%d, 2, v%d' % (vWA, vWA))
        if opt.get('dv', 0) == 2: p('v_mul_f32 v%d, s%d, v%d' % (vEPS, sQ25, vEPS))
        if opt.get('lp', 0): p('s_setprio %d' % opt['lp'])
        p('s_waitcnt lgkmcnt(0)')
        p('s_barrier')
        vissue0()
        p('s_barrier')
        for i, w in enumerate(oth): p('ds_read_b64 %s, v%d offset:%d' % (vr(R + 2 * i, 2), vRA, 512 * w))
        for h in range(2): p('ds_read_b128 %s, v%d offset:%d' % (vr(ZR + 4 * h, 4), D2, 4096 + 16 * h))
        p('s_waitcnt lgkmcnt(2)')
        p('v_pk_add_f32 %s, %s, %s' % (vr(R, 2), vr(R, 2), vr(R + 2, 2)))
        p('v_pk_add_f32 %s, %s, %s' % (vr(R + 4, 2), vr(R + 4, 2), vr(R + 6, 2)))
        p('v_pk_add_f32 %s, %s, %s' % (vr(R + 8, 2), vr(R + 8, 2), vr(R + 10, 2)))
        p('v_pk_add_f32 %s, %s, %s' % (vr(R, 2), vr(R, 2), vr(R + 4, 2)))
        p('v_pk_add_f32 %s, %s, %s' % (vr(R + 8, 2), vr(R + 8, 2), vr(R + 12, 2)))
        p('s_waitcnt lgkmcnt(0)')
        p('v_pk_add_f32 %s, %s, %s' % (vr(A4, 2), vr(R, 2), vr(R + 8, 2)))
        p('v_pk_add_f32 %s, %s, %s' % (vr(ZR, 2), vr(ZR, 2), vr(ZR + 2, 2)))
        p('v_pk_add_f32 %s, %s, %s' % (vr(ZR + 4, 2), vr(ZR + 4, 2), vr(ZR + 6, 2)))
        p('v_pk_add_f32 %s, %s, %s' % (vr(ZR, 2), vr(ZR, 2), vr(ZR + 4, 2)))
        p('v_add_f32 v%d, v%d, v%d' % (GA, ZR, ZR + 1))
        vphase()
        p('s_cmp_eq_u32 s3, %d' % CC)
        stamp(1 if TS else 4)
        p('s_cbranch_scc1 L_cons')
        p('s_nop 5')
    elif not HELP: den_write()
    if WF == 1: weights(PH + 12)
    if sched: loadVg(cum[0], cum[1])
    if WF == 3 and not ORD: vphase()
    for u in range(0 if WF == 3 else 4):
        p.comment('V block %d' % u)
        if WF == 1 and u == 3:
            for t in range(8):
                p('v_mul_f32 v%d, v%d, v%d' % (KB + t, PQ, ACC + 4 * t))
                for r in range(1, 4): p('v_fmac_f32 v%d, v%d, v%d' % (KB + t, PQ + r, ACC + 4 * t + r))
                if t: p('v_mfma_f32_16x16x4_f32 %s, v%d, v%d, 0' % (vr(ACC + 4 * t - 4, 4), vE0, KB + t - 1))
            p('v_mfma_f32_16x16x4_f32 %s, v%d, v%d, 0' % (vr(ACC + 28, 4), vE0, KB + 7))
        left = 24 - 8 * u + (1 if XP > u + 1 else 0)
        if sched:
            left = 2 * (cum[min(u + 1, 3)] - 4 * (u + 1))
            assert left >= 0
        v_block(vbase[u], PH + 4 * u, u == 0, left, u == 3 and FW)
        if sched and u < 2: loadVg(cum[u + 1], cum[u + 2])
        if BS == 1: p('s_memrealtime %s' % sr(sST + 10 + 2 * u, 2))
        if u == 0 and HELP:
            p('s_cmp_lt_u32 s40, %d' % (8 + HW))
            p('s_cbranch_scc1 L_xok')
            p('s_mov_b32 s38, 0x40000')
            p('L_xpoll:')
            p('v_cmp_ne_u32 vcc, s%d, v%d' % (sE, GX + 3))
            p('s_cbranch_vccz L_xok')
            p('buffer_load_dwordx4 %s, v%d, %s, 0 offen sc1' % (vr(GX, 4), vL16, sr(RX, 4)))
            p('s_waitcnt vmcnt(0)')
            p('s_sub_u32 s38, s38, 1')
            p('s_cbranch_scc0 L_xpoll')
            p('L_xok:')
            p('v_add_f32 v%d, v%d, v%d' % (Dn, Dn, GX + 2))
            den_write()
    if not ORD:
        if not TS: stamp(3)
        N = KB
        if WF == 3:
            p('s_mov_b32 exec_hi, 0')
            p('ds_write_b128 v%d, %s' % (vWA, vr(A4, 4)))
            p('s_mov_b32 exec_hi, -1')
        elif WF:
            p('s_mov_b64 exec, 0xffff')
            for t in range(8):
                p('v_add_f32 v%d, v%d, v%d' % (N + t, ACC + 4 * t, ACC + 4 * t + 1))
                if t == 3: p('ds_write_b128 v%d, %s' % (vWA, vr(N, 4)))
            p('ds_write_b128 v%d, %s offset:16' % (vWA, vr(N + 4, 4)))
            p('s_mov_b64 exec, -1')
        else:
            num_fold(N)
            if HELP: p('v_pk_add_f32 %s, %s, %s' % (vr(N, 2), vr(N, 2), vr(GX, 2)))
            p('ds_write_b64 v%d, %s' % (vWA, vr(N, 2)))
        if BS:
            p('s_getreg_b32 s%d, hwreg(HW_REG_XCC_ID)' % (sST + 18))
            p('s_getreg_b32 s%d, hwreg(HW_REG_HW_ID)' % (sST + 19))
            p('s_lshl_b32 s36, s2, 3'); p('s_add_u32 s36, s36, s18'); p('s_lshl_b32 s36, s36, 7')
            p('s_add_u32 s36, s36, 0x8000000')
            srd(p, 20, 16, 36, 128)
            p('s_waitcnt lgkmcnt(0)')
            p('v_mov_b32 v%d, 0' % (KB + 47))
            for i in range(20): p('v_mov_b32 v%d, s%d' % (KB + 48 + i, sST + i))
            for i in range(5): p('buffer_store_dwordx4 %s, v%d, s[20:23], 0 offen offset:%d' % (vr(KB + 48 + 4 * i, 4), KB + 47, 16 * i))
        if LH:
            p('s_cmp_lt_u32 s%d, %d' % (40 if XP else 18, 0 if NOH == 2 else LH))
            p('s_cbranch_scc1 L_lh')
            p('L_lhdone:')
        if PW == 1:
            p('s_cmp_lg_u32 s18, %d' % PUB)
            p('s_cbranch_scc1 L_nopw')
            p('s_not_b32 s37, s%d' % sE)
            p('s_add_u32 s38, s57, 8192')
            p('v_mov_b32 v%d, s37' % (KB + 43))
            p('buffer_store_dwordx4 %s, v%d, s[28:31], s38 offen' % (vr(KB + 40, 4), vL16))
            p('L_nopw:')
        p('s_cmp_lg_u32 s18, %d' % PUB)
        p('s_waitcnt lgkmcnt(0)')
        p('s_barrier')
        p('s_cbranch_scc1 L_end')
        stamp(1 if TS else 4)
        R, ZR, GA = KB + 8, KB + 24, KB + 32
        p('v_mov_b32 v%d, 0' % D2)
        for w in range(8): p('ds_read_b64 %s, v%d offset:%d' % (vr(R + 2 * w, 2), vRA, 512 * w))
        for h in range(2): p('ds_read_b128 %s, v%d offset:%d' % (vr(ZR + 4 * h, 4), D2, 4096 + 16 * h))
        p('v_mov_b32 v%d, s%d' % (GA + 3, sE))
        p('s_add_u32 s38, s57, 8192')
        p('s_waitcnt lgkmcnt(6)')
        p('v_pk_add_f32 %s, %s, %s' % (vr(R, 2), vr(R, 2), vr(R + 2, 2)))
        p('v_pk_add_f32 %s, %s, %s' % (vr(R + 4, 2), vr(R + 4, 2), vr(R + 6, 2)))
        p('s_waitcnt lgkmcnt(2)')
        p('v_pk_add_f32 %s, %s, %s' % (vr(R + 8, 2), vr(R + 8, 2), vr(R + 10, 2)))
        p('v_pk_add_f32 %s, %s, %s' % (vr(R + 12, 2), vr(R + 12, 2), vr(R + 14, 2)))
        p('v_pk_add_f32 %s, %s, %s' % (vr(R, 2), vr(R, 2), vr(R + 4, 2)))
        p('v_pk_add_f32 %s, %s, %s' % (vr(R + 8, 2), vr(R + 8, 2), vr(R + 12, 2)))
        p('s_waitcnt lgkmcnt(0)')
        p('v_pk_add_f32 %s, %s, %s' % (vr(ZR, 2), vr(ZR, 2), vr(ZR + 2, 2)))
        p('v_pk_add_f32 %s, %s, %s' % (vr(ZR + 4, 2), vr(ZR + 4, 2), vr(ZR + 6, 2)))
        p('v_pk_add_f32 %s, %s, %s' % (vr(GA, 2), vr(R, 2), vr(R + 8, 2)))
        p('v_pk_add_f32 %s, %s, %s' % (vr(ZR, 2), vr(ZR, 2), vr(ZR + 4, 2)))
        p('s_cmp_eq_u32 s3, %d' % CC)
        p('v_add_f32 v%d, v%d, v%d' % (GA + 2, ZR, ZR + 1))
        p('s_cbranch_scc1 L_cons')
    if DUAL: p('buffer_store_dwordx4 %s, v%d, s[28:31], s38 offen' % (vr(GA, 4), vL16))
    p('buffer_store_dwordx4 %s, v%d, s[28:31], s57 offen sc1' % (vr(GA, 4), vL16))
    if STAMP:
        stamp(2 if TS else 5)
        p('s_branch L_stamps')
    else:
        p('s_endpgm')
    p('L_cons:')
    stamp(2 if TS else 5)
    srcs = [s for s in range(8) if s != CC]
    TT = KB + 36
    M = TT
    G0 = KB + 48
    p('s_movk_i32 s40, 0x%x' % (0x2000 if DUAL else 0))
    p('s_movk_i32 s41, 0x%x' % (0x3000 if DUAL else 0x1000))
    p('s_mov_b32 s38, 0x40000')
    fN, fD, fT = (2, 0, 1) if ORD else (0, 2, 3)
    if not ORD: p('v_lshlrev_b32 v%d, 2, v0' % vK)
    DV = opt.get('dv', 0)
    if DV == 2 and not ORD: p('v_mul_f32 v%d, s%d, v%d' % (vEPS, sQ25, vEPS))
    GS = [G0 + 28 * i for i in range(PP)]
    def issue(G):
        for i, s in enumerate(srcs):
            p('buffer_load_dwordx4 %s, v%d, s[28:31], %s offen offset:%d sc1' % (vr(G + 4 * i, 4), vL16, 's41' if s >= 4 else 's40', 1024 * (s & 3)))
    def check(G, left, lab):
        for i in range(7):
            p('s_waitcnt vmcnt(%d)' % (left + 6 - i))
            if i == 0: p('v_xor_b32 v%d, s%d, v%d' % (M, sE, G + fT))
            else: p('v_bitop3_b32 v%d, v%d, s%d, v%d bitop3:0xbe' % (M, G + 4 * i + fT, sE, M))
        p('v_cmp_ne_u32 vcc, 0, v%d' % M)
        p('s_cbranch_vccz %s' % lab)
    for i in range(PP - 1): issue(GS[i])
    p('L_poll:')
    for i in range(PP):
        issue(GS[(i + PP - 1) % PP])
        if DUAL and i == 0:
            p('s_cmp_eq_u32 s38, 0x%x' % (0x40000 - N1))
            p('s_cselect_b32 s40, 0, s40')
            p('s_cselect_b32 s41, 0x1000, s41')
        check(GS[i], 7 * (PP - 1), 'L_rdy%d' % i)
    p('s_sub_u32 s38, s38, 1')
    p('s_cbranch_scc0 L_poll')
    for i in reversed(range(PP)):
        p('L_rdy%d:' % i)
        stamp(4 if TS else 6)
        G = GS[i]
        GN, GD = GA + fN, GA + fD
        def n(a): return vr(G + 4 * a + fN, 2)
        def d(a): return G + 4 * a + fD
        p('v_add_f32 v%d, v%d, v%d' % (GD, GD, d(0)))
        for a, b in ((1, 2), (3, 4), (5, 6), (1, 3)): p('v_add_f32 v%d, v%d, v%d' % (d(a), d(a), d(b)))
        p('v_pk_add_f32 %s, %s, %s' % (vr(GN, 2), vr(GN, 2), n(0)))
        p('v_add_f32 v%d, v%d, v%d' % (GD, GD, d(5)))
        for a, b in ((1, 2), (3, 4), (5, 6)): p('v_pk_add_f32 %s, %s, %s' % (n(a), n(a), n(b)))
        p('v_add_f32 v%d, v%d, v%d' % (GD, GD, d(1)))
        p('v_pk_add_f32 %s, %s, %s' % (n(1), n(1), n(3)))
        p('v_pk_add_f32 %s, %s, %s' % (vr(GN, 2), vr(GN, 2), n(5)))
        if PP > 1:
            p('v_pk_add_f32 %s, %s, %s' % (vr(GN, 2), vr(GN, 2), n(1)))
            if i: p('s_branch L_fin')
    if PP > 1: p('L_fin:')
    Dn = GD
    p('v_cvt_pk_bf16_f32 v%d, 0, v%d' % (Dn, Dn))
    if PP == 1: p('v_pk_add_f32 %s, %s, %s' % (vr(GN, 2), vr(GN, 2), n(1)))
    if DV == 2: p('v_fma_f32 v%d, v%d, s%d, v%d' % (Dn, Dn, sQ25, vEPS))
    else: p('v_add_f32 v%d, v%d, v%d' % (Dn, Dn, vEPS))
    p('v_cvt_pk_bf16_f32 v%d, 0, v%d' % (GN, GN))
    p('v_cvt_pk_bf16_f32 v%d, 0, v%d' % (GN + 1, GN + 1))
    p('v_cvt_pk_bf16_f32 v%d, 0, v%d' % (Dn, Dn))
    if DV == 2:
        p('v_mul_f32 v%d, s%d, v%d' % (GN, sQ25, GN))
        p('v_rcp_f32 v%d, v%d' % (Dn, Dn))
        p('v_mul_f32 v%d, s%d, v%d' % (GN + 1, sQ25, GN + 1))
        p('v_mul_f32 v%d, v%d, v%d' % (GN, GN, Dn))
        p('v_mul_f32 v%d, v%d, v%d' % (GN + 1, GN + 1, Dn))
    elif DV:
        p('v_mul_f32 v%d, 0.5, v%d' % (Dn, Dn))
        p('v_pk_mul_f32 %s, %s, 0.5 op_sel_hi:[1,0]' % (vr(GN, 2), vr(GN, 2)))
        p('v_mul_f32 v%d, 0.5, v%d' % (Dn, Dn))
        p('v_pk_mul_f32 %s, %s, 0.5 op_sel_hi:[1,0]' % (vr(GN, 2), vr(GN, 2)))
        p('v_rcp_f32 v%d, v%d' % (Dn, Dn))
        p('v_pk_mul_f32 %s, %s, %s op_sel_hi:[1,0]' % (vr(GN, 2), vr(GN, 2), vr(Dn, 2)))
    else: division2(p, GN, GN + 1, Dn, TT)
    p('v_cvt_pk_bf16_f32 v%d, v%d, v%d' % (GN, GN, GN + 1))
    p('buffer_store_dword v%d, v%d, s[32:35], 0 offen' % (GN, vWA if ORD else vK))
    p('s_mov_b64 exec, 1')
    p('global_store_dword v%d, v%d, s[10:11]' % (D2, GA + fT))
    p('s_mov_b64 exec, -1')
    if STAMP:
        if TS: stamp(5)
        p('L_stamps:')
        p('s_waitcnt vmcnt(0)')
        stamp(6)
        p('s_getreg_b32 s%d, hwreg(HW_REG_XCC_ID)' % (sST + 14))
        p('s_getreg_b32 s%d, hwreg(HW_REG_HW_ID)' % (sST + 15))
        p('s_lshl_b32 s36, s2, 6')
        p('s_add_u32 s36, s36, 0x8000000')
        srd(p, 20, 16, 36, 64)
        for i in range(16): p('v_mov_b32 v%d, s%d' % (KB + 48 + i, sST + i))
        for i in range(4): p('buffer_store_dwordx4 %s, v%d, s[20:23], 0 offen offset:%d' % (vr(KB + 48 + 4 * i, 4), D2, 16 * i))
    p('L_end:')
    p('s_endpgm')
    if LH:
        p('L_lh:')
        p('s_waitcnt lgkmcnt(0)')
        p('s_bitcmp1_b32 s2, 0')
        p('s_cbranch_scc1 L_recv')
        p('s_add_u32 s37, s39, 256')
        srd(p, R3K, 8, 37, 256)
        for kk in range(4): p('buffer_load_dwordx4 %s, v%d, %s, 0 offen offset:%d' % (vr(PH + 4 * kk, 4), vG, sr(R3K, 4), 64 * kk))
        p('s_xor_b32 s37, s36, 0x%x' % ((1 << 21) | (1 << pos[5]) | (1 << pos[6]) | (1 << pos[7])))
        srd(p, 20, 4, 37, KSZ)
        loadKblk(3, KB, 20)
        srd(p, 24, 6, 37, KSZ)
        loadVblk(3, KB + 32, 24)
        xaddr(8192)
        p('s_add_u32 s%d, s%d, 0x%08x' % (sE2, sE2, TAGK))
        p('s_waitcnt vmcnt(16)')
        phi_q(p, PH, OM, T, SQ, PQ, S0, vONE, vEPS)
        p('s_waitcnt vmcnt(8)')
        k_block(KB, PH)
        den_fold(1, GX + 2, vDA)
        v_block(KB + 32, PH, True, 0, False)
        num_fold(KB)
        p('v_mov_b32 v%d, s%d' % (GX + 3, sE2))
        p('v_mov_b32 v%d, v%d' % (GX, KB))
        p('v_mov_b32 v%d, v%d' % (GX + 1, KB + 1))
        p('buffer_store_dwordx4 %s, v%d, %s, 0 offen sc1' % (vr(GX, 4), vL16, sr(RX, 4)))
        p('s_branch L_lhdone')
        p('L_recv:')
        if not XP: xaddr(0)
        p('s_mov_b32 s38, 0x40000')
        if XP: p('s_branch L_xchk')
        p('L_xpoll:')
        p('buffer_load_dwordx4 %s, v%d, %s, 0 offen sc1' % (vr(GX, 4), vL16, sr(RX, 4)))
        p('s_waitcnt vmcnt(0)')
        p('L_xchk:')
        p('v_cmp_ne_u32 vcc, s%d, v%d' % (sE, GX + 3))
        p('s_cbranch_vccz L_xok')
        p('s_sub_u32 s38, s38, 1')
        p('s_cbranch_scc0 L_xpoll')
        p('L_xok:')
        p('v_pk_add_f32 %s, %s, %s' % (vr(KB, 2), vr(KB, 2), vr(GX, 2)))
        p('v_add_f32 v%d, v%d, v%d' % (vT0, vT0, GX + 2))
        p('ds_write_b64 v%d, %s' % (vWA, vr(KB, 2)))
        p('s_mov_b64 exec, 1')
        p('ds_write_b32 v%d, v%d' % (vDA, vT0))
        p('s_mov_b64 exec, -1')
        p('s_branch L_lhdone')
    return p, (L_Q + 2048 if OLDS else 4160)

def build(opt):
    m, lds = main_kernel(opt)
    s = HDR
    if 'diag' in opt:
        s += '; @launch kernel=%s grid=(256,1,1) block=(512,1,1) lds=%d\n' % (NAME, lds)
        s += '; @launch kernel=rfa_diag_kernel grid=(1,1,1) block=(256,1,1) lds=64\n'
    else:
        s += '; @launch grid=(256,1,1) block=(512,1,1) lds=%d\n' % lds
    s += '.amdgcn_target "amdgcn-amd-amdhsa--gfx950"\n.text\n'
    s += '.globl %s\n.p2align 8\n.type %s,@function\n%s:\n' % (NAME, NAME, NAME)
    s += m.finalize() + '\n'
    sys.stderr.write('%s: %d instr, %d nop states\n' % (NAME, len(m.out), m.nops))
    if 'diag' in opt:
        n = 'rfa_diag_kernel'
        s += '.globl %s\n.p2align 8\n.type %s,@function\n%s:\n' % (n, n, n) + diag_kernel(opt).finalize() + '\n'
    s += '.section .rodata,"a"\n.p2align 6\n' + kd(NAME, 256, 102)
    if 'diag' in opt: s += '.p2align 6\n' + kd('rfa_diag_kernel', 16)
    return s

if __name__ == '__main__':
    opt = {k: (v if k == 'p10' else int(v)) for k, v in (kv.split('=') for kv in sys.argv[2:])}
    open(sys.argv[1], 'w').write(build(opt))
```

```python
import sys, struct
from asmlib import Prog
from gen1 import vr, sr, srd, kd, HDR, consts, scale_tiles, exp_phase, phi_q, EPS, sMASK, sSC, sL2E, sQ25, sSELLO, sSELHI
from gen2 import diag_kernel

NAME = 'standalone__linear_kernel_rfa__decode_kernel'
WS_E = 0x80000
WS_X = 0x100000
TAGK = 0x9E3779B9
L_OM, L_Q = 4160, 4160 + 4096

def division2(p, N0, N1, Dn, T):
    R = [(N0, T, 'vcc'), (N1, T + 5, 's[58:59]')]
    for N, t, c in R: p('v_div_scale_f32 v%d, s[60:61], v%d, v%d, v%d' % (t + 1, Dn, Dn, N))
    for N, t, c in R: p('v_div_scale_f32 v%d, %s, v%d, v%d, v%d' % (t, c, N, Dn, N))
    for N, t, c in R: p('v_rcp_f32 v%d, v%d' % (t + 2, t + 1))
    for N, t, c in R: p('v_fma_f32 v%d, -v%d, v%d, 1.0' % (t + 3, t + 1, t + 2))
    for N, t, c in R: p('v_fmac_f32 v%d, v%d, v%d' % (t + 2, t + 3, t + 2))
    for N, t, c in R: p('v_mul_f32 v%d, v%d, v%d' % (t + 4, t, t + 2))
    for N, t, c in R: p('v_fma_f32 v%d, -v%d, v%d, v%d' % (t + 3, t + 1, t + 4, t))
    for N, t, c in R: p('v_fmac_f32 v%d, v%d, v%d' % (t + 4, t + 3, t + 2))
    for N, t, c in R: p('v_fma_f32 v%d, -v%d, v%d, v%d' % (t + 3, t + 1, t + 4, t))
    for N, t, c in R:
        if c != 'vcc': p('s_mov_b64 vcc, %s' % c)
        p('v_div_fmas_f32 v%d, v%d, v%d, v%d' % (t + 3, t + 3, t + 2, t + 4))
    for N, t, c in R: p('v_div_fixup_f32 v%d, v%d, v%d, v%d' % (N, t + 3, Dn, N))

def main_kernel(opt):
    p = Prog()
    STAMP = opt.get('stamp', 0)
    XMAP = opt.get('xmap', 0)
    SQM = opt.get('sqm', 1)
    FW = opt.get('fw', 1)
    PRIO = opt.get('prio', 1)
    NT = ['', ' nt'][opt.get('nt', 1)]
    PUB = opt.get('pub', 0)
    CC = opt.get('cc', 0)
    TS = opt.get('ts', 0)
    OLDS = opt.get('olds', 1)
    DUAL = opt.get('dual', 1)
    N1 = opt.get('n1', 48)
    HELP = opt.get('help', 0)
    HW = 8 - HELP
    VT = opt.get('vt', 0)
    PW = opt.get('pw', 0)
    BS = opt.get('bs', 0)
    EL = opt.get('el', 1)
    NG = opt.get('ng', 4)
    TH = opt.get('th', 0)
    HB = opt.get('hb', 0)
    WF = opt.get('wf', 0)
    PP = opt.get('pp', 1)
    ORD = opt.get('ord', 0)
    FA = opt.get('fa', 0)
    VO = opt.get('vo', 0)
    VORD = [sum(((t >> i) & 1) << int(c) for i, c in enumerate(('%04d' % VO)[::-1])) for t in range(16)] if VO else list(range(16))
    assert sorted(VORD) == list(range(16)) and (WF == 3 or not VO)
    if ORD:
        assert WF == 3
        PUB = opt.get('pub', 7)
    VI = '%04d' % opt.get('vi', 0)
    DM = opt.get('dm', 0)
    NOH = opt.get('noh', 0)
    XP = opt.get('xp', 0)
    LH = opt.get('lh', 0)
    THW = opt.get('thw', 4)
    OML = opt.get('oml', 0)
    NE = opt.get('ne', 4)
    TAB = opt.get('tab', 0)
    assert not (HELP and (TAB or XMAP))
    vK, vL16, vV, vEPS, vONE, vWA, vRA = 1, 2, 3, 4, 5, 6, 7
    OM, KB, TB, ACC, ZACC, PH, X = 8, 24, 152, 184, 216, 220, 236
    ONES, PQ, vG, vT0, vT1, vDA, vW, GX = X, X + 4, X + 8, X + 9, X + 10, X + 11, X + 12, X + 16
    sST, sE, sE2 = 64, 62, 63
    def stamp(i):
        if STAMP:
            p('s_memrealtime %s' % sr(sST + 2 * i, 2)); p('s_waitcnt lgkmcnt(0)')
    p('s_load_dwordx4 s[4:7], s[0:1], 8')
    p('s_load_dwordx2 s[8:9], s[0:1], 0')
    p('s_load_dwordx4 s[12:15], s[0:1], 24')
    p('s_load_dwordx2 s[16:17], s[0:1], 48')
    if STAMP or BS: p('s_memrealtime %s' % sr(sST, 2))
    p('s_cmp_ge_u32 s2, 256')
    p('s_cbranch_scc1 L_end')
    if PRIO: p('s_setprio 3')
    p('v_lshrrev_b32 v9, 6, v0')
    p('v_and_b32 v0, 63, v0')
    if XMAP == 0:
        HM = [int(c) for c in '%05d' % opt.get('hm', 43210)][::-1]
        if HM == [0, 1, 2, 3, 4]: p('s_and_b32 s19, s2, 31')
        elif HM == [3, 4, 0, 1, 2]:
            p('s_and_b32 s19, s2, 7'); p('s_bfe_u32 s3, s2, 0x20003'); p('s_lshl2_add_u32 s19, s19, s3')
        else:
            p('s_mov_b32 s19, 0')
            for i, b in enumerate(HM):
                p('s_bfe_u32 s3, s2, 0x%x' % (0x10000 | b)); p('s_lshl_b32 s3, s3, %d' % i); p('s_or_b32 s19, s19, s3')
        p('s_lshr_b32 s3, s2, 5')
    elif XMAP == 1:
        p('s_lshr_b32 s19, s2, 3'); p('s_and_b32 s3, s2, 7')
    else:
        p('s_lshr_b32 s19, s2, 3'); p('s_xor_b32 s3, s2, s19'); p('s_and_b32 s3, s3, 7')
    p('v_readfirstlane_b32 s18, v9')
    P10 = opt.get('p10')
    if P10:
        pos = {int(c, 16): 20 - i for i, c in enumerate(P10)}
        assert sorted(pos) == list(range(1, 11)) and not HELP
        p('s_lshl_b32 s36, s19, 21')
        def place(reg, srcs):
            i = 0
            while i < 3:
                n = 1
                while i + n < 3 and pos[srcs + i + n] == pos[srcs + i] + n: n += 1
                if n == 3: p('s_lshl_b32 s37, s%d, %d' % (reg, pos[srcs]))
                else:
                    p('s_bfe_u32 s37, s%d, 0x%x' % (reg, (n << 16) | i)); p('s_lshl_b32 s37, s37, %d' % pos[srcs + i])
                p('s_or_b32 s36, s36, s37')
                i += n
        place(3, 8); place(18, 5)
        def goff(G): return sum(((G >> b) & 1) << pos[1 + b] for b in range(4))
    else:
        p('s_lshl_b32 s36, s19, 21')
        p('s_lshl_b32 s37, s3, 18')
        p('s_add_u32 s36, s36, s37')
        PERM = [int(c) for c in '%08d' % opt.get('perm', 65271340)][::-1]
        assert sorted(PERM) == list(range(8)) and PERM[0] == 0
        wpos = [10 + PERM.index(5 + i) for i in range(3)]
        if wpos[1] == wpos[0] + 1 and wpos[2] == wpos[0] + 2:
            p('v_lshlrev_b32 v%d, %d, v9' % (vW, wpos[0]))
        elif wpos[1] == wpos[0] + 1:
            p('v_lshrrev_b32 v13, 2, v9'); p('v_and_b32 v9, 3, v9')
            p('v_lshlrev_b32 v9, %d, v9' % wpos[0]); p('v_lshl_add_u32 v%d, v13, %d, v9' % (vW, wpos[2]))
        else:
            p('v_bfe_u32 v13, v9, 1, 1'); p('v_lshrrev_b32 v14, 2, v9'); p('v_and_b32 v9, 1, v9')
            p('v_lshlrev_b32 v9, %d, v9' % wpos[0]); p('v_lshl_add_u32 v9, v13, %d, v9' % wpos[1]); p('v_lshl_add_u32 v%d, v14, %d, v9' % (vW, wpos[2]))
        def goff(G):
            return sum(((2 * G >> src) & 1) << (10 + ob) for ob, src in enumerate(PERM) if src < 5)
    sofs = {0: '0'}
    for G in range(16):
        a = goff(G) & ~4095
        if a not in sofs: sofs[a] = 's%d' % ([41, 42, 43, 44, 45, 46, 47, 80, 81, 82, 83, 84, 85, 86, 87][len(sofs) - 1])
    p('v_lshrrev_b32 v10, 4, v0')
    p('v_lshlrev_b32 v%d, 4, v10' % vG)
    p('v_and_b32 v11, 1, v0')
    p('v_bfe_u32 v12, v0, 2, 2')
    p('v_lshl_add_u32 v11, v11, 2, v12')
    p('v_lshl_add_u32 v%d, v11, 8, v%d' % (vK, vG))
    p('v_bfe_u32 v12, v0, 1, 1')
    p('v_lshl_add_u32 v%d, v12, 6, v%d' % (vK, vK))
    if TAB:
        p('s_load_dwordx2 s[58:59], s[0:1], 40')
        p('s_waitcnt lgkmcnt(0)')
        p('s_load_dwordx16 s[80:95], s[58:59], 0')
        p('s_lshl_b32 s37, s18, 2'); p('s_add_u32 s37, s37, 64'); p('s_load_dword s60, s[58:59], s37')
        p('s_lshl_b32 s37, s3, 2'); p('s_add_u32 s37, s37, 96'); p('s_load_dword s61, s[58:59], s37')
        p('s_lshl_b32 s37, s19, 2'); p('s_add_u32 s37, s37, 128'); p('s_load_dword s19, s[58:59], s37')
        p('s_waitcnt lgkmcnt(0)')
        p('s_add_u32 s60, s60, s61')
        p('v_mov_b32 v%d, s60' % vW)
        p('s_lshl_b32 s36, s19, 21')
        sofs = {4096 * G: 's%d' % (80 + G) for G in range(16)}
        def goff(G): return 4096 * G
    if not P10: p('v_add_u32 v%d, v%d, v%d' % (vK, vK, vW))
    for a, r in sofs.items():
        if a and not TAB: p('s_mov_b32 %s, %d' % (r, a))
    if opt.get('po'):
        new = {pos[1 + i]: int(c, 16) for i, c in enumerate(opt['po'])}
        assert sorted(new) == sorted(new.values()) and min(new) >= 12
        p('s_bitcmp%d_b32 s2, %d' % (opt.get('pe', 1), opt.get('pb', 0)))
        for a, r in sofs.items():
            b = sum(1 << new.get(i, i) for i in range(32) if a >> i & 1)
            if a != b: p('s_cmov_b32 %s, %d' % (r, b))
    KSZ = 0x200000 if TAB else (goff(15) + 2048 if P10 else 0x40000)
    if P10: vV = vL16
    p('v_and_b32 v8, 15, v0')
    p('v_lshlrev_b32 v%d, 4, v0' % vL16)
    p('v_lshl_add_u32 v%d, v8, 8, v%d' % (vT1, vG))
    p('s_lshl_b32 s39, s19, 8')
    p('s_mov_b32 s22, 0x%x' % KSZ)
    p('s_mov_b32 s23, 0x00020000')
    def loadKblk(u, dst, R=20):
        for G in range(4 * u, 4 * u + 4):
            for h in range(2):
                p('buffer_load_dwordx4 %s, v%d, %s, %s offen offset:%d%s' % (vr(dst + 8 * (G & 3) + 4 * h, 4), X + 13 if DM and R == 88 else vK, sr(20 if DM and R == 88 else R, 4), sofs[goff(G) & ~4095], 128 * h + (goff(G) & 4095), NT))
    def loadKg(G0, G1, R=20):
        for G in range(G0, G1):
            for h in range(2):
                p('buffer_load_dwordx4 %s, v%d, %s, %s offen offset:%d%s' % (vr(KB + 8 * G + 4 * h, 4), vK, sr(R, 4), sofs[goff(G) & ~4095], 128 * h + (goff(G) & 4095), NT))
    def loadVg(G0, G1):
        for G in range(G0, G1):
            for h in range(2):
                p('buffer_load_dwordx4 %s, v%d, %s, %s offen offset:%d%s' % (vr(KB + 8 * G + 4 * h, 4), vV, sr(24, 4), sofs[goff(G) & ~4095], 1024 * h + (goff(G) & 4095), NT))
    def loadVblk(u, dst, R=24):
        for G in range(4 * u, 4 * u + 4):
            for h in range(2):
                p('buffer_load_dwordx4 %s, v%d, %s, %s offen offset:%d%s' % (vr(dst + 8 * (G & 3) + 4 * h, 4), X + 14 if DM and R == 92 else vV, sr(24 if DM and R == 92 else R, 4), sofs[goff(G) & ~4095], 1024 * h + (goff(G) & 4095), NT))
    T, SQ, S0 = ACC, ACC + 8, ACC + 20
    RW = [TB + 6 * G for G in range(4)]
    SW_ = [ACC + 8 + 6 * G for G in range(4)]
    SQ4 = TB + 24
    def k_block(kb, ph, hook=None):
        pend = []
        for G in range(4):
            for h in range(2):
                ks = [kb + 8 * G + 4 * h + i for i in range(4)]
                for i, k in enumerate(ks): p('v_lshlrev_b32 v%d, 16, v%d' % (T + 2 * i, k))
                for i, k in enumerate(ks): p('v_and_b32 v%d, s%d, v%d' % (T + 2 * i + 1, sMASK, k))
                for x in pend: p(x)
                pend = []
                for i, k in enumerate(ks): p('v_pk_mul_f32 %s, %s, %s' % (vr(T + 2 * i, 2), vr(T + 2 * i, 2), sr(sSC, 2)))
                for i, k in enumerate(ks): p('v_cvt_pk_bf16_f32 v%d, v%d, v%d' % (k, T + 2 * i, T + 2 * i + 1))
                for i, k in enumerate(ks):
                    pend.append('v_dot2_f32_bf16 v%d, v%d, v%d, %s' % (SQ4 + G, k, k, '0' if (h == 0 and i == 0) else 'v%d' % (SQ4 + G)))
                pend.append('v_mfma_f32_16x16x32_bf16 %s, %s, %s, %s' % (vr(RW[G] + 2, 4), vr(ks[0], 4), vr(OM + 8 * h, 4), '0' if h == 0 else vr(RW[G] + 2, 4)))
                if h == 0 and G > 0:
                    g1 = G - 1
                    pend.append('v_mfma_f32_16x16x4_f32 %s, v%d, v%d, 0' % (vr(SW_[g1] + 2, 4), SQ4 + g1, vONE))
                    for hh in range(2):
                        pend.append('v_mfma_f32_16x16x32_bf16 %s, %s, %s, %s' % (vr(RW[g1], 4), vr(kb + 8 * g1 + 4 * hh, 4), vr(OM + 8 * hh + 4, 4), vr(RW[g1], 4)))
                if h == 1 and G > 0 and SQM:
                    g1 = G - 1
                    pend.append('v_mfma_f32_16x16x4_f32 %s, v%d, v%d, %s' % (vr(SW_[g1], 4), SQ4 + g1, vONE, vr(SW_[g1], 4)))
        for x in pend: p(x)
        p('v_mfma_f32_16x16x4_f32 %s, v%d, v%d, 0' % (vr(SW_[3] + 2, 4), SQ4 + 3, vONE))
        def first_round(Gs):
            for G in Gs:
                for b in range(2): p('v_cvt_pk_bf16_f32 v%d, 0, v%d' % (RW[G] + 2 + b, RW[G] + 2 + b))
            for G in Gs:
                if not SQM: p('v_pk_add_f32 %s, %s, %s' % (vr(SW_[G] + 2, 2), vr(SW_[G] + 2, 2), vr(SW_[G] + 4, 2)))
                for b in range(2): p('v_cvt_pk_bf16_f32 v%d, 0, v%d' % (SW_[G] + 2 + b, SW_[G] + 2 + b))
        first_round([0, 1])
        for hh in range(2):
            p('v_mfma_f32_16x16x32_bf16 %s, %s, %s, %s' % (vr(RW[3], 4), vr(kb + 24 + 4 * hh, 4), vr(OM + 8 * hh + 4, 4), vr(RW[3], 4)))
        if SQM: p('v_mfma_f32_16x16x4_f32 %s, v%d, v%d, %s' % (vr(SW_[3], 4), SQ4 + 3, vONE, vr(SW_[3], 4)))
        if hook: hook()
        first_round([2])
        regs = [(RW[G] + 2 + b, SW_[G] + 2 + b) for G in range(4) for b in range(2)]
        for a, b in regs[:6]: p('v_fma_f32 v%d, v%d, -0.5, v%d' % (a, b, a))
        for a, b in regs[:6]: p('v_cvt_pk_bf16_f32 v%d, 0, v%d' % (a, a))
        first_round([3])
        for a, b in regs[6:]: p('v_fma_f32 v%d, v%d, -0.5, v%d' % (a, b, a))
        for a, b in regs[6:]: p('v_cvt_pk_bf16_f32 v%d, 0, v%d' % (a, a))
        for a, b in regs: p('v_mul_f32 v%d, s%d, v%d' % (a, sL2E, a))
        for a, b in regs: p('v_exp_f32 v%d, v%d' % (a, a))
        for a, b in regs: p('v_cvt_pk_bf16_f32 v%d, 0, v%d' % (a, a))
        for a, b in regs: p('v_fma_f32 v%d, v%d, s%d, v%d' % (a, a, sQ25, vEPS))
        for G in range(4):
            p('v_cvt_pk_bf16_f32 v%d, v%d, v%d' % (ph + G, RW[G] + 2, RW[G] + 3))
    def v_block(vb, ph, first, left, fine):
        def vmf(t, tb):
            p('v_mfma_f32_16x16x32_bf16 %s, %s, %s, %s' % (vr(ACC + 4 * t, 4), vr(ph, 4), vr(tb, 4), '0' if first else vr(ACC + 4 * t, 4)))
        def prm(w, q, hi):
            p('v_perm_b32 v%d, v%d, v%d, s%d' % (TB + 8 * w + 4 * hi + q, vb + 4 * (2 * q + 1) + w, vb + 4 * (2 * q) + w, sSELHI if hi else sSELLO))
        if fine:
            for q in range(4):
                p('s_waitcnt vmcnt(%d)' % (left + 6 - 2 * q))
                for w in range(4):
                    prm(w, q, 0); prm(w, q, 1)
                    if q == 3 and w > 0:
                        for b in range(2): vmf(2 * (w - 1) + b, TB + 8 * (w - 1) + 4 * b)
        else:
            if left is not None: p('s_waitcnt vmcnt(%d)' % left)
            for w in range(4):
                for hi in range(2):
                    for q in range(4): prm(w, q, hi)
                if w > 0:
                    for b in range(2): vmf(2 * (w - 1) + b, TB + 8 * (w - 1) + 4 * b)
        for b in range(2): vmf(6 + b, TB + 24 + 4 * b)
    def den_fold(nb, Dn, D2):
        for u in range(nb):
            p('v_mfma_f32_16x16x32_bf16 %s, %s, %s, %s' % (vr(ZACC, 4), vr(PH + 4 * u, 4), vr(ONES, 4), '0' if u == 0 else vr(ZACC, 4)))
        p('v_mul_f32 v%d, v%d, v%d' % (Dn, PQ, ZACC))
        for r in range(1, 4): p('v_fmac_f32 v%d, v%d, v%d' % (Dn, PQ + r, ZACC + r))
        for sw in ('v_permlane32_swap_b32', 'v_permlane16_swap_b32'):
            p('v_mov_b32 v%d, v%d' % (D2, Dn))
            p('%s v%d, v%d' % (sw, Dn, D2))
            p('v_add_f32 v%d, v%d, v%d' % (Dn, Dn, D2))
    def num_fold(N):
        for t in range(8):
            p('v_mul_f32 v%d, v%d, v%d' % (N + t, PQ, ACC + 4 * t))
            for r in range(1, 4): p('v_fmac_f32 v%d, v%d, v%d' % (N + t, PQ + r, ACC + 4 * t + r))
        for t in range(4): p('v_permlane32_swap_b32 v%d, v%d' % (N + t, N + t + 4))
        for t in range(4): p('v_add_f32 v%d, v%d, v%d' % (N + t, N + t, N + t + 4))
        for t in range(2): p('v_permlane16_swap_b32 v%d, v%d' % (N + t, N + t + 2))
        for t in range(2): p('v_add_f32 v%d, v%d, v%d' % (N + t, N + t, N + t + 2))
    def setup_consts():
        consts(p)
        p('v_mov_b32 v%d, 0x%08x' % (vEPS, EPS))
        p('v_mov_b32 v%d, 1.0' % vONE)
        if WF != 3:
            for i in range(4): p('v_mov_b32 v%d, 0x3f803f80' % (ONES + i))
    def eload(addr=True, load=True):
        if opt.get('e7', 0) and addr != 'now': return
        if addr:
            p('s_lshl_b32 s37, s19, 7')
            p('s_add_u32 s37, s37, 0x%x' % WS_E)
            p('s_add_u32 s10, s16, s37')
            p('s_addc_u32 s11, s17, 0')
        if load: p('s_load_dword s%d, s[10:11], 0 glc' % sE)
    R3K, R3V, RX = (88, 92, 96) if HELP or LH else (20, 24, 96)
    if LH:
        assert P10 and not OLDS and not HELP and not XMAP and 'hm' not in opt
        HW = 8 - LH
    def help_setup():
        p('s_and_b32 s37, s2, 1')
        p('s_lshl_b32 s37, s37, 3')
        p('s_add_u32 s40, s37, s18')
        p('s_cmp_ge_u32 s40, %d' % (8 + HW))
        p('s_cselect_b32 s%d, 0, 0x%x' % (R3K + 2, KSZ))
        p('s_mov_b32 s%d, s20' % R3K); p('s_mov_b32 s%d, s21' % (R3K + 1)); p('s_mov_b32 s%d, s23' % (R3K + 3))
    def xaddr(plus):
        p('s_lshl_b32 s37, s2, 3')
        p('s_add_u32 s37, s37, s18')
        p('s_lshl_b32 s37, s37, 10')
        p('s_add_u32 s37, s37, 0x%x' % (WS_X + plus))
        srd(p, RX, 16, 37, 1024)
    def helper():
        p('s_sub_u32 s37, s40, %d' % HW)
        p('s_cmp_ge_u32 s37, %d' % HELP)
        p('s_cbranch_scc1 L_nohelp')
        if OLDS < 2: p('s_load_dword s%d, s[10:11], 128 glc' % sE2)
        if not OLDS:
            p('s_add_u32 s37, s39, 256')
            srd(p, 32, 8, 37, 256)
            for kk in range(4): p('buffer_load_dwordx4 %s, v%d, s[32:35], 0 offen offset:%d' % (vr(PH + 4 * kk, 4), vG, 64 * kk))
        def hloads():
            p('v_add_u32 v%d, v%d, v%d' % (vV, vL16, vW))
            p('s_add_u32 s37, s36, 0x200000')
            srd(p, 24, 4, 37, KSZ)
            loadKblk(3, KB, 24)
            srd(p, 24, 6, 37, KSZ)
            loadVblk(3, KB + 32, 24)
        if OLDS == 2 and HB:
            hloads()
            share(16)
            p('s_barrier')
        elif OLDS == 2:
            share(0)
            p('s_barrier')
            hloads()
        else: hloads()
        if OLDS == 2 and PRIO: p('s_setprio 2')
        setup_consts()
        xaddr(8192)
        if OLDS:
            if OLDS == 1:
                p('s_waitcnt lgkmcnt(0)')
                p('s_barrier')
            for kk in range(4): p('ds_read_b128 %s, v%d offset:%d' % (vr(OM + 4 * kk, 4), vL16, L_OM + 1024 * kk))
            for kk in range(4): p('ds_read_b128 %s, v%d offset:%d' % (vr(PH + 4 * kk, 4), vG, L_Q + 256 + 64 * kk))
        p('s_waitcnt lgkmcnt(0)')
        if OLDS == 2: p('s_load_dword s%d, s[10:11], 128 glc' % sE2)
        else: p('s_add_u32 s%d, s%d, 0x%08x' % (sE2, sE2, TAGK))
        if not OLDS: p('s_waitcnt vmcnt(16)')
        phi_q(p, PH, OM, T, SQ, PQ, S0, vONE, vEPS)
        p('s_waitcnt vmcnt(8)')
        k_block(KB, PH)
        den_fold(1, GX + 2, vT1)
        v_block(KB + 32, PH, True, 0, False)
        num_fold(KB)
        if OLDS == 2:
            p('s_waitcnt lgkmcnt(0)')
            p('s_add_u32 s%d, s%d, 0x%08x' % (sE2, sE2, TAGK))
        p('v_mov_b32 v%d, s%d' % (GX + 3, sE2))
        p('v_mov_b32 v%d, v%d' % (GX, KB))
        p('v_mov_b32 v%d, v%d' % (GX + 1, KB + 1))
        p('buffer_store_dwordx4 %s, v%d, %s, 0 offen sc1' % (vr(GX, 4), vL16, sr(RX, 4)))
        if OLDS == 1: p('s_branch L_kload')
        if OLDS == 2: p('s_branch L_kl2')
        p('L_nohelp:')
    def share(left):
        p('s_waitcnt vmcnt(%d)' % (left + 1))
        p('ds_write_b128 v%d, %s' % (vT0, vr(OM, 4)))
        p('s_waitcnt vmcnt(%d)' % left)
        p('ds_write_b128 v%d, %s offset:%d' % (vL16, vr(OM + 4, 4), L_Q))
        p('s_waitcnt lgkmcnt(0)')
    if OLDS >= 2:
        assert not (HELP and (OLDS == 3 or NG > 12))
        def fetch():
            srd(p, 28, 12, None, 4096)
            p('buffer_load_dwordx4 %s, v%d, s[28:31], s38 offen' % (vr(OM, 4), vT1))
            if HELP:
                p('s_and_b32 s37, s39, 0xfffffe00')
                srd(p, 32, 8, 37, 512)
            else: srd(p, 32, 8, 39, 256)
            p('buffer_load_dwordx4 %s, v%d, s[32:35], 0 offen' % (vr(OM + 4, 4), vL16))
        p('s_and_b32 s37, s18, 3')
        p('s_lshl_b32 s38, s37, 6')
        p('s_lshl_b32 s37, s37, 10')
        p('s_add_u32 s37, s37, %d' % L_OM)
        p('v_add_u32 v%d, s37, v%d' % (vT0, vL16))
        p('s_cmp_ge_u32 s18, 4')
        p('s_cbranch_scc1 L_late')
        if PRIO and OLDS == 2: p('s_setprio 2')
        p('s_waitcnt lgkmcnt(0)')
        p('s_add_u32 s20, s4, s36')
        p('s_addc_u32 s21, s5, 0')
        if OLDS == 3: fetch()
        loadKg(0, NG)
        if OLDS == 3: share(2 * NG)
        eload(True, False)
        if HELP: help_setup()
        p('s_barrier')
        p('s_branch L_join')
        p('L_late:')
        p('s_waitcnt lgkmcnt(0)')
        if OLDS == 2: fetch()
        p('s_add_u32 s20, s4, s36')
        p('s_addc_u32 s21, s5, 0')
        eload(True, False)
        if HELP:
            help_setup(); helper()
        if OLDS == 2:
            if PRIO: p('s_setprio 2')
            share(0)
        p('s_barrier')
        if HELP: p('L_kl2:')
        loadKg(0, NG)
        p('L_join:')
        loadKg(NG, 12)
        loadKg(max(NG, 12), 16, R3K)
        if PRIO: p('s_setprio 0')
        if HELP:
            p('s_and_b32 s37, s39, 256')
            p('v_add_u32 v%d, s37, v%d' % (vT0, vG))
        for kk in range(4): p('ds_read_b128 %s, v%d offset:%d' % (vr(OM + 4 * kk, 4), vL16, L_OM + 1024 * kk))
        for kk in range(4): p('ds_read_b128 %s, v%d offset:%d' % (vr(PH + 4 * kk, 4), vT0 if HELP else vG, L_Q + 64 * kk))
    elif OLDS:
        p('s_lshl_b32 s38, s18, 6')
        p('s_and_b32 s37, s39, 0xfffffe00')
        p('s_cmp_lt_u32 s18, 4')
        p('s_cselect_b32 s30, 0x1000, 0')
        p('s_cselect_b64 vcc, -1, 0')
        p('s_cmp_eq_u32 s18, 4')
        p('s_cselect_b32 s30, 0x200, s30')
        p('s_cselect_b32 s38, 0, s38')
        p('s_mov_b32 s31, 0x00020000')
        p('v_cndmask_b32 v%d, v%d, v%d, vcc' % (vT1, vL16, vT1))
        p('s_waitcnt lgkmcnt(0)')
        p('s_add_u32 s8, s8, s37')
        p('s_addc_u32 s9, s9, 0')
        p('s_cmp_lt_u32 s18, 4')
        p('s_cselect_b32 s28, s12, s8')
        p('s_cselect_b32 s29, s13, s9')
        p('s_add_u32 s20, s4, s36')
        p('s_addc_u32 s21, s5, 0')
        p('buffer_load_dwordx4 %s, v%d, s[28:31], s38 offen' % (vr(OM, 4), vT1))
        eload(True, not EL)
        if HELP: help_setup()
        p('s_min_u32 s37, s18, 5')
        p('s_lshl_b32 s37, s37, 10')
        p('s_add_u32 s37, s37, %d' % L_OM)
        p('v_add_u32 v%d, s37, v%d' % (vT0, vL16))
        p('s_cmp_lt_u32 s18, %d' % NE)
        p('s_cbranch_scc1 L_kload')
        p('s_waitcnt vmcnt(0)')
        p('ds_write_b128 v%d, %s' % (vT0, vr(OM, 4)))
        if HELP:
            helper()
        p('s_waitcnt lgkmcnt(0)')
        p('s_barrier')
        p('L_kload:')
        for u in range(4): loadKblk(u, KB + 32 * u, R3K if u == 3 else 20)
        if PRIO: p('s_setprio 0')
        p('s_cmp_ge_u32 s18, %d' % NE)
        p('s_cbranch_scc1 L_shared')
        p('s_waitcnt vmcnt(32)')
        p('ds_write_b128 v%d, %s' % (vT0, vr(OM, 4)))
        p('s_waitcnt lgkmcnt(0)')
        p('s_barrier')
        p('L_shared:')
        p('s_lshl_b32 s37, s19, 8')
        p('s_and_b32 s37, s37, 256')
        p('v_add_u32 v%d, s37, v%d' % (vT0, vG))
        for kk in range(4): p('ds_read_b128 %s, v%d offset:%d' % (vr(OM + 4 * kk, 4), vL16, L_OM + 1024 * kk))
        for kk in range(4): p('ds_read_b128 %s, v%d offset:%d' % (vr(PH + 4 * kk, 4), vT0, L_Q + 64 * kk))
    else:
        LS = opt.get('ls', 0)
        if 'ol' in opt:
            def loadKn(a, b):
                for n in range(a, b):
                    G, h = n >> 1, n & 1
                    p('buffer_load_dwordx4 %s, v%d, s[20:23], %s offen offset:%d%s' % (vr(KB + 8 * G + 4 * h, 4), vK, sofs[goff(G) & ~4095], 128 * h + (goff(G) & 4095), NT))
            HPR = opt.get('hpr', 0)
            Q1 = opt.get('q1', 0)
            if Q1:
                p('v_and_b32 v%d, 3, v0' % vT0)
                p('v_lshl_add_u32 v%d, v%d, 6, v%d' % (vG, vT0, vG))
            def omq(k, k2, hi=0):
                st = opt.get('ohs' if hi else 'os', 0)
                o0 = 0 if hi else opt.get('o0', 0)
                ld = [(0 if i < o0 else min(32, k + st * i), 'buffer_load_dwordx4 %s, v%d, s[28:31], 0 offen offset:%d' % (vr(OM + 4 * i, 4), vT1, 64 * i)) for i in range(4)]
                if Q1: ld += [(k2, 'buffer_load_dwordx4 %s, v%d, s[32:35], 0 offen' % (vr(TB, 4), vG))]
                else: ld += [(min(32, max(k2, k + st * (4 + i))), 'buffer_load_dwordx4 %s, v%d, s[32:35], 0 offen offset:%d' % (vr(PH + 4 * i, 4), vG, 64 * i)) for i in range(4)]
                ld.sort(key=lambda x: x[0])
                n, done = 0, False
                for i, (at, txt) in enumerate(ld):
                    if at > k and not done and not opt.get('ee', 0):
                        eload(); done = True
                    loadKn(n, at); n = at
                    p(txt)
                if not done: eload()
                loadKn(n, 32)
                return n
            OLo, OHi = opt['ol'], opt.get('oh', opt['ol'])
            QLo, QHi = opt.get('ql', OLo), opt.get('qh', OHi)
            p('s_mov_b32 s30, 0x1000'); p('s_mov_b32 s31, 0x00020000'); p('s_mov_b32 s34, 0x100'); p('s_mov_b32 s35, 0x00020000')
            p('s_waitcnt lgkmcnt(0)')
            p('s_add_u32 s20, s4, s36')
            p('s_addc_u32 s21, s5, 0')
            p('s_mov_b32 s28, s12'); p('s_mov_b32 s29, s13')
            p('s_add_u32 s32, s8, s39'); p('s_addc_u32 s33, s9, 0')
            p('s_cmp_ge_u32 s18, 4')
            p('s_cbranch_scc1 L_hi')
            QLo = omq(OLo, QLo)
            p('s_branch L_j')
            p('L_hi:')
            QHi = omq(OHi, QHi, 1)
            p('L_j:')
            if PRIO: p('s_setprio 0')
        elif LS:
            assert ORD and PUB >= 4 and LS >= OML and not (HELP or LH or VT or BS)
            p('s_cmp_ge_u32 s18, 4')
            p('s_waitcnt lgkmcnt(0)')
            p('s_add_u32 s20, s4, s36')
            p('s_addc_u32 s21, s5, 0')
            p('s_cmp_ge_u32 s18, 4')
            p('s_cbranch_scc1 L_hi')
            for u in range(OML): loadKblk(u, KB + 32 * u)
            srd(p, 28, 12, None, 4096)
            for kk in range(4): p('buffer_load_dwordx4 %s, v%d, s[28:31], 0 offen offset:%d' % (vr(OM + 4 * kk, 4), vT1, 64 * kk))
            srd(p, 32, 8, 39, 256)
            for kk in range(4): p('buffer_load_dwordx4 %s, v%d, s[32:35], 0 offen offset:%d' % (vr(PH + 4 * kk, 4), vG, 64 * kk))
            eload(True, False)
            p('s_mov_b32 s%d, 0' % sE)
            for u in range(OML, LS): loadKblk(u, KB + 32 * u)
            p('s_cmp_lg_u32 s18, %d' % opt.get('lw', 0))
            p('s_cbranch_scc1 L_nosh')
            p('s_waitcnt vmcnt(%d)' % (8 * (LS - OML)))
            for kk in range(4): p('ds_write_b128 v%d, %s offset:%d' % (vL16, vr(OM + 4 * kk, 4), L_OM + 1024 * kk))
            for kk in range(4): p('ds_write_b128 v%d, %s offset:%d' % (vL16, vr(PH + 4 * kk, 4), L_Q + 1024 * kk))
            p('s_waitcnt lgkmcnt(0)')
            p('L_nosh:')
            p('s_barrier')
            for u in range(LS, 4): loadKblk(u, KB + 32 * u)
            if PRIO: p('s_setprio 0')
            p('s_branch L_j')
            p('L_hi:')
            eload()
            p('s_barrier')
            for u in range(4): loadKblk(u, KB + 32 * u)
            if PRIO: p('s_setprio 0')
            for kk in range(4): p('ds_read_b128 %s, v%d offset:%d' % (vr(OM + 4 * kk, 4), vL16, L_OM + 1024 * kk))
            for kk in range(4): p('ds_read_b128 %s, v%d offset:%d' % (vr(PH + 4 * kk, 4), vL16, L_Q + 1024 * kk))
            p('L_j:')
        else:
            p('s_waitcnt lgkmcnt(0)')
            if opt.get('hs', 0): p('s_memrealtime %s' % sr(sST + 6, 2))
            p('s_add_u32 s20, s4, s36')
            p('s_addc_u32 s21, s5, 0')
            for u in range(OML): loadKblk(u, KB + 32 * u)
            if opt.get('hs', 0) == 2:
                p('s_waitcnt vmcnt(7)')
                p('s_memrealtime %s' % sr(sST + 6, 2))
            if opt.get('hs', 0) == 3:
                p('s_waitcnt vmcnt(0)')
                p('s_memrealtime %s' % sr(sST + 6, 2))
            srd(p, 28, 12, None, 4096)
            for kk in range(4): p('buffer_load_dwordx4 %s, v%d, s[28:31], 0 offen offset:%d' % (vr(OM + 4 * kk, 4), vT1, 64 * kk))
            if HELP:
                eload(); help_setup(); helper()
            srd(p, 32, 8, 39, 256)
            for kk in range(4): p('buffer_load_dwordx4 %s, v%d, s[32:35], 0 offen offset:%d' % (vr(PH + 4 * kk, 4), vG, 64 * kk))
            if not HELP: eload()
            if LH:
                p('s_load_dword s%d, s[10:11], 128 glc' % sE2)
                help_setup()
                if DM:
                    p('s_cselect_b32 s49, 0, -1')
                    p('v_and_b32 v%d, s49, v%d' % (X + 13, vK))
                    p('v_and_b32 v%d, s49, v%d' % (X + 14, vL16))
            if VT & 96:
                p('s_cmp_lg_u32 s18, %d' % PUB)
                p('s_cbranch_scc1 L_notouch')
                if VT & 32:
                    p('s_lshl_b32 s37, s19, 14')
                    p('v_mov_b32 v%d, s37' % (X + 13))
                    p('global_load_dword v%d, v%d, s[16:17] offset:%d' % (X + 13, X + 13, 1024 * CC))
                if VT & 64:
                    p('v_mov_b32 v%d, s39' % (X + 14))
                    p('global_load_dword v%d, v%d, s[14:15]' % (X + 14, X + 14))
                p('L_notouch:')
            for u in range(OML, 4):
                loadKblk(u, KB + 32 * u, R3K if u == 3 else 20)
                if BS == 2: p('s_memrealtime %s' % sr(sST + 2 + 2 * u, 2))
            if PRIO: p('s_setprio 0')
    if not P10: p('v_add_u32 v%d, v%d, v%d' % (vV, vL16, vW))
    srd(p, 24, 6, 36, KSZ)
    if VT & 2: p('s_load_dword s59, s[24:25], 0')
    setup_consts()
    if LH:
        p('s_mov_b32 s%d, s24' % R3V); p('s_mov_b32 s%d, s25' % (R3V + 1)); p('s_mov_b32 s%d, s%d' % (R3V + 2, R3K + 2)); p('s_mov_b32 s%d, s27' % (R3V + 3))
        if XP:
            p('s_lshl_b32 s37, s2, 3')
            p('s_xor_b32 s38, s18, 7')
            p('s_add_u32 s37, s37, s38')
            p('s_lshl_b32 s37, s37, 10')
            p('s_add_u32 s37, s37, 0x%x' % WS_X)
            srd(p, RX, 16, 37, 1024)
        p('s_cmp_ge_u32 s40, %d' % (8 + HW))
        p('s_cselect_b32 s49, 0, -1')
        if XP:
            p('s_cselect_b32 s%d, 1024, 0' % (RX + 2))
            p('s_xor_b32 s37, s40, 15')
            p('s_min_u32 s40, s40, s37')
    if HELP:
        p('s_mov_b32 s%d, s24' % R3V); p('s_mov_b32 s%d, s25' % (R3V + 1)); p('s_mov_b32 s%d, s%d' % (R3V + 2, R3K + 2)); p('s_mov_b32 s%d, s27' % (R3V + 3))
        xaddr(0)
        p('s_cmp_ge_u32 s40, %d' % (8 + HW))
        p('s_cselect_b32 s%d, 1024, 0' % (RX + 2))
        p('s_cselect_b32 s49, 0, -1')
    vS0, vS1, vE0 = X + 13, X + 14, X + 15
    if WF == 3:
        assert not (HELP or LH or VT or OLDS or TH or int(VI))
        SEL, vDA, vDS, vIX = X + 8, X + 14, X + 15, vK
        vS0, vS1 = SEL + 2, SEL + 3
        p('s_lshl_b32 s37, s18, 9')
        if ORD: p('v_lshl_add_u32 v%d, v0, 3, s37' % vWA)
        else:
            p('v_and_b32 v%d, 15, v0' % vWA)
            p('v_bfe_u32 v%d, v0, 4, 1' % vDS)
            p('v_lshl_add_u32 v%d, v%d, 1, v%d' % (vWA, vWA, vDS))
            p('v_lshl_add_u32 v%d, v%d, 4, s37' % (vWA, vWA))
        p('v_bfe_u32 v%d, v0, 3, 1' % vS0)
        p('v_lshlrev_b32 v%d, 4, v%d' % (vS0, vS0))
        p('s_movk_i32 s37, 0x3f80')
        p('v_lshlrev_b32 v%d, v%d, s37' % (vS0, vS0))
        p('v_bfe_u32 v%d, v0, 2, 1' % vS1)
        p('v_and_b32 v%d, 1, v0' % vDS)
        p('v_lshl_add_u32 v%d, v%d, 1, v%d' % (vS1, vS1, vDS))
        p('v_lshrrev_b32 v%d, 4, v0' % vDS)
        p('v_cmp_eq_u32 vcc, v%d, v%d' % (vS1, vDS))
        p('v_cndmask_b32 v%d, 0, v%d, vcc' % (vS0, vS0))
        p('v_and_b32 v%d, 2, v0' % vDS)
        p('v_cmp_eq_u32 vcc, 0, v%d' % vDS)
        p('v_cndmask_b32 v%d, v%d, 0, vcc' % (vS1, vS0))
        p('v_cndmask_b32 v%d, 0, v%d, vcc' % (vS0, vS0))
        for i in (0, 1, 4, 5): p('v_mov_b32 v%d, 0' % (SEL + i))
        if ORD:
            p('v_lshrrev_b32 v%d, 2, v0' % vIX)
            p('v_and_b32 v%d, 2, v%d' % (vIX, vIX))
            p('v_bitop3_b32 v%d, v%d, v0, 3 bitop3:0x28' % (vIX, vIX))
        else: p('v_and_b32 v%d, 3, v0' % vIX)
        p('v_mul_u32_u24 v%d, 0x5555, v%d' % (vIX, vIX))
    elif WF:
        assert not (HELP or LH or VT & 124)
        p('v_lshlrev_b32 v%d, 5, v0' % vWA)
        p('s_lshl_b32 s37, s18, 9')
        p('v_add_u32 v%d, s37, v%d' % (vWA, vWA))
        p('v_and_b32 v%d, 1, v0' % vS0)
        p('v_lshlrev_b32 v%d, 4, v%d' % (vS0, vS0))
        p('s_movk_i32 s37, 0x3f80')
        p('v_lshlrev_b32 v%d, v%d, s37' % (vS0, vS0))
        p('v_bfe_u32 v%d, v0, 2, 2' % vS1)
        p('v_lshrrev_b32 v%d, 4, v0' % vE0)
        p('v_cmp_eq_u32 vcc, v%d, v%d' % (vS1, vE0))
        p('v_cndmask_b32 v%d, 0, v%d, vcc' % (vS0, vS0))
        p('v_and_b32 v%d, 2, v0' % vE0)
        p('v_cmp_eq_u32 vcc, 0, v%d' % vE0)
        p('v_cndmask_b32 v%d, v%d, 0, vcc' % (vS1, vS0))
        p('v_cndmask_b32 v%d, 0, v%d, vcc' % (vS0, vS0))
        p('v_and_b32 v%d, 15, v0' % vE0)
        p('v_cmp_eq_u32 vcc, 0, v%d' % vE0)
        p('v_cndmask_b32 v%d, 0, 1.0, vcc' % vE0)
    else:
        p('v_and_b32 v%d, 15, v0' % vWA)
        p('v_lshlrev_b32 v%d, 6, v%d' % (vWA, vWA))
        p('v_add_u32 v%d, v%d, v%d' % (vWA, vWA, vG))
        p('v_lshrrev_b32 v%d, 1, v%d' % (vWA, vWA))
        p('s_lshl_b32 s37, s18, 9')
        p('v_add_u32 v%d, s37, v%d' % (vWA, vWA))
    p('s_lshl_b32 s56, s19, 14')
    srd(p, 28, 16, 56, 16384)
    p('s_lshl_b32 s57, s3, 10')
    srd(p, 32, 14, 39, 256)
    p('v_lshlrev_b32 v%d, 3, v0' % vRA)
    p('s_lshl_b32 s37, s18, 2')
    p('s_add_u32 s37, s37, 4096')
    p('v_mov_b32 v%d, s37' % vDA)
    vbase = [KB + 32 * u for u in range(4)]
    NTOUCH = 0
    if VT & 28: p('v_mov_b32 v%d, 0' % vT0)
    if VT & 4:
        p('buffer_load_dword v%d, v%d, s[28:31], 0 offen offset:%d' % (X + 13, vT0, 1024 * CC)); NTOUCH += 1
    if VT & 8:
        p('buffer_load_dword v%d, v%d, s[32:35], 0 offen' % (X + 14, vT0)); NTOUCH += 1
    if VT & 16:
        p('buffer_load_dword v%d, v%d, s[24:27], 0 offen' % (X + 15, vW)); NTOUCH += 1
    if 'ol' in opt:
        p('s_cmp_ge_u32 s18, 4')
        p('s_cbranch_scc1 L_hi2')
        p('s_waitcnt vmcnt(%d)' % (32 - QLo))
        p('s_branch L_j2')
        p('L_hi2:')
        p('s_waitcnt vmcnt(%d)' % (32 - QHi))
        p('L_j2:')
        if Q1:
            for kk in range(4):
                for r in range(4): p('v_mov_b32_dpp v%d, v%d row_newbcast:%d row_mask:0xf bank_mask:0xf' % (PH + 4 * kk + r, TB + r, kk))
    elif opt.get('ls', 0):
        p('s_cmp_ge_u32 s18, 4')
        p('s_cbranch_scc1 L_hi2')
        p('s_waitcnt vmcnt(%d)' % (32 - 8 * OML))
        p('L_hi2:')
        p('s_waitcnt lgkmcnt(0)')
    else: p('s_waitcnt lgkmcnt(0)' if OLDS else 's_waitcnt vmcnt(%d)' % (32 - 8 * OML + NTOUCH))
    if OLDS >= 2 or (OLDS and EL): eload(False, True)
    if not TS: stamp(1)
    phi_q(p, PH, OM, T, SQ, PQ, S0, vONE, vEPS)
    def vissue():
        if HELP: p('buffer_load_dwordx4 %s, v%d, %s, 0 offen sc1' % (vr(GX, 4), vL16, sr(RX, 4)))
        if TH:
            p('s_and_b32 s37, s2, 1')
            p('s_lshl_b32 s37, s37, 3')
            p('s_add_u32 s37, s37, s18')
            p('s_sub_u32 s37, s37, %d' % THW)
            p('s_cmp_ge_u32 s37, %d' % (8 - THW))
            p('s_cbranch_scc1 L_vfree')
            n = 0
            for G in range(16):
                for h in range(2):
                    if n >= TH: p('s_waitcnt vmcnt(%d)' % (TH - 1))
                    p('buffer_load_dwordx4 %s, v%d, %s, %s offen offset:%d%s' % (vr(KB + 8 * G + 4 * h, 4), vV, sr(24, 4), sofs[goff(G) & ~4095], 1024 * h + (goff(G) & 4095), NT))
                    n += 1
            p('s_branch L_vdone')
            p('L_vfree:')
        if VO:
            for G in VORD: loadVg(G, G + 1)
            return
        for uu in range(4):
            if XP == uu + 1: p('buffer_load_dwordx4 %s, v%d, %s, 0 offen sc1' % (vr(GX, 4), vL16, sr(RX, 4)))
            loadVblk(uu, vbase[uu], R3V if uu == 3 else 24)
            if BS == 2: p('s_memrealtime %s' % sr(sST + 10 + 2 * uu, 2))
        if TH: p('L_vdone:')
    def weights(P3):
        p.comment('w[k] = sum_m phi_q[m] phi[m][k], as a high and a low bf16 row')
        SL, T0, U0, BM, BE = TB, TB + 8, TB + 16, TB + 24, TB + 25
        for i, r in enumerate((None, None, vS0, vS1, None, None)): p('v_mov_b32 v%d, %s' % (SL + i, 'v%d' % r if r else '0'))
        p('v_and_b32 v%d, 15, v0' % BE)
        p('v_cmp_eq_u32 vcc, 1, v%d' % BE)
        p('v_mfma_f32_16x16x32_bf16 %s, %s, %s, 0' % (vr(T0, 4), vr(P3, 4), vr(SL + 2, 4)))
        p('v_mfma_f32_16x16x32_bf16 %s, %s, %s, 0' % (vr(T0 + 4, 4), vr(P3, 4), vr(SL, 4)))
        p('v_cndmask_b32 v%d, 0, 1.0, vcc' % BE)
        p('v_add_f32 v%d, v%d, v%d' % (BM, BE, vE0))
        for r in range(4):
            for sx in range(2):
                p('%s v%d, v%d, v%d' % ('v_fmac_f32' if r else 'v_mul_f32', SL + sx, PQ + r, T0 + 4 * sx + r))
        for sx in range(2): p('v_mfma_f32_16x16x4_f32 %s, v%d, v%d, 0' % (vr(U0 + 4 * sx, 4), SL + sx, BM))
        for q in range(4): p('v_cvt_pk_bf16_f32 v%d, v%d, v%d' % (P3 + q, U0 + 2 * q, U0 + 2 * q + 1))
        for q in range(4):
            p('v_lshlrev_b32 v%d, 16, v%d' % (T0 + 2 * q, P3 + q))
            p('v_and_b32 v%d, s%d, v%d' % (T0 + 2 * q + 1, sMASK, P3 + q))
        for i in range(8): p('v_fma_f32 v%d, -v%d, v%d, v%d' % (U0 + i, BE, T0 + i, U0 + i))
        for q in range(4): p('v_cvt_pk_bf16_f32 v%d, v%d, v%d' % (P3 + q, U0 + 2 * q, U0 + 2 * q + 1))
    WREG = [[PH + i for i in range(8)], [PH + 8 + i for i in range(4)] + [ZACC + i for i in range(4)],
            [ONES + i for i in range(4)] + [GX + i for i in range(4)], [TB + 24 + i for i in range(8)]]
    AREG = [ACC, ACC + 16, OM, TB]
    A4 = PH + 12
    def expand(u, lo=0, hi=8):
        for i in range(lo, hi):
            w = WREG[u][i]
            p('v_pk_mul_f32 %s, %s, %s op_sel:[%d,0] op_sel_hi:[%d,1]' % (vr(AREG[u] + 2 * i, 2), vr(w & ~1, 2), vr(SEL, 2), w & 1, w & 1))
    def weights3(u):
        p.comment('w[k] = sum_m phi_q[m] phi[m][k], as a (low, high) bf16 pair per key')
        P3, SL, T0, U0 = PH + 12, TB, TB + 8, TB + 16
        p('v_mfma_f32_16x16x32_bf16 %s, %s, %s, 0' % (vr(T0, 4), vr(P3, 4), vr(SEL + 2, 4)))
        p('v_mfma_f32_16x16x32_bf16 %s, %s, %s, 0' % (vr(T0 + 4, 4), vr(P3, 4), vr(SEL, 4)))
        if u == 3:
            p('v_and_b32 v%d, 4, v0' % SL)
            p('v_cmp_eq_u32 vcc, 0, v%d' % SL)
            p('v_cndmask_b32 v%d, 0, 1.0, vcc' % SEL)
            p('v_cndmask_b32 v%d, 1.0, 0, vcc' % (SEL + 1))
            expand(0, 0, 4)
        for r in range(4):
            for sx in range(2):
                p('%s v%d, v%d, v%d' % ('v_fmac_f32' if r else 'v_mul_f32', SL + sx, PQ + r, T0 + 4 * sx + r))
        if u: p('v_add_f32 v%d, v%d, v%d' % (vDS, vDS, SL))
        p('v_add_f32 v%d, v%d, v%d' % (vDS, vDS if u else SL, SL + 1))
        for sx in range(2): p('v_mfma_f32_16x16x4_f32 %s, v%d, v%d, 0' % (vr(U0 + 4 * sx, 4), SL + sx, vONE))
        if u == 3:
            expand(0, 4, 8); expand(1)
            p('v_mfma_f32_16x16x4_f32 %s, v%d, v%d, 0' % (vr(ZACC, 4), vDS, vONE))
        for i in range(8): p('v_cvt_pk_bf16_f32 v%d, 0, v%d' % (T0 + i, U0 + i))
        for i in range(0, 8, 2): p('v_pk_add_f32 %s, %s, %s neg_lo:[0,1] neg_hi:[0,1]' % (vr(T0 + i, 2), vr(U0 + i, 2), vr(T0 + i, 2)))
        for i in range(8): p('v_cvt_pk_bf16_f32 v%d, v%d, v%d' % (WREG[u][i], T0 + i, U0 + i))
    sched = [2 * int(c) for c in VI] if int(VI) else None
    if sched:
        assert sum(sched) == 16 and not (HELP or LH or TH or BS)
        cum = [sum(sched[:i + 1]) for i in range(4)]
        def vissue(): loadVg(0, cum[0])
    if ORD:
        vissue0 = vissue
        def vissue():
            p('s_cmp_eq_u32 s18, %d' % PUB)
            p('s_cbranch_scc1 L_vlater')
            vissue0()
            if not FA:
                p('s_cmp_lt_u32 s18, 4')
                p('s_cbranch_scc1 L_vlater')
            p('s_barrier')
            p('L_vlater:')
    for u in range(4):
        p.comment('K block %d' % u)
        if opt.get('e7', 0) == u + 1:
            eload('now', False)
            p('s_mov_b32 s%d, 0' % sE)
            p('s_cmp_lg_u32 s18, %d' % PUB)
            p('s_cbranch_scc1 L_noe')
            p('s_load_dword s%d, s[10:11], 0 glc' % sE)
            p('L_noe:')
        p('s_waitcnt vmcnt(%d)' % (24 - 8 * u + NTOUCH))
        if BS == 1: p('s_memrealtime %s' % sr(sST + 2 + 2 * u, 2))
        k_block(KB + 32 * u, PH + 12 if WF == 3 else PH + 4 * u, vissue if u == 3 else None)
        if WF == 2: weights(PH + 4 * u)
        if WF == 3: weights3(u)
    if HELP or LH:
        for G in range(4): p('v_and_b32 v%d, s49, v%d' % (PH + 12 + G, PH + 12 + G))
    if not TS: stamp(2)
    Dn, D2 = vT0, vT1
    if WF == 2:
        for u in range(4):
            p('v_mfma_f32_16x16x32_bf16 %s, %s, %s, %s' % (vr(ZACC, 4), vr(PH + 4 * u, 4), vr(ONES, 4), '0' if u == 0 else vr(ZACC, 4)))
        p('v_add_f32 v%d, v%d, v%d' % (Dn, ZACC, ZACC + 1))
    elif WF == 3:
        p('v_pk_add_f32 %s, %s, %s' % (vr(ZACC, 2), vr(ZACC, 2), vr(ZACC + 2, 2)))
        for i in range(4): p('v_mov_b32 v%d, 0' % (A4 + i))
        p('v_add_f32 v%d, v%d, v%d' % (vDS, ZACC, ZACC + 1))
        expand(2, 0, 2)
        p('v_mfma_f32_16x16x4_f32 %s, v%d, v%d, 0' % (vr(ZACC, 4), vDS, vONE))
        expand(2, 2, 8); expand(3)
        Dn = ZACC
    else: den_fold(4, Dn, D2)
    p('s_waitcnt lgkmcnt(0)')
    p('s_add_u32 s%d, s%d, 0x%08x' % (sE, sE, TAGK))
    def den_write():
        p('s_mov_b64 exec, 1')
        p('ds_write_b32 v%d, v%d' % (vDA, Dn))
        p('s_mov_b64 exec, -1')
    def vphase(xtra=0):
        for u in range(4):
            p.comment('V block %d' % u)
            for q in range(4):
                p('s_waitcnt vmcnt(%d)' % (30 - 8 * u - 2 * q + xtra))
                G = VORD[4 * u + q]
                p('v_smfmac_f32_16x16x64_bf16 %s, %s, %s, v%d' % (vr(A4, 4), vr(AREG[G >> 2] + 4 * (G & 3), 4), vr(KB + 8 * G, 8), vIX))
            if BS == 1: p('s_memrealtime %s' % sr(sST + 10 + 2 * u, 2))
    if ORD:
        assert not BS
        p('s_cmp_eq_u32 s18, %d' % PUB)
        den_write()
        p('s_cbranch_scc1 L_last')
        vphase()
        p('ds_write_b64 v%d, %s' % (vWA, vr(A4, 2)))
        HP = opt.get('hp', 0)
        if opt.get('dd', 0):
            p('s_cmp_ge_u32 s18, 4')
            p('s_cbranch_scc1 L_nodd')
            p('s_lshl_b32 s36, s2, 2'); p('s_add_u32 s36, s36, s18'); p('s_lshl_b32 s36, s36, 12'); p('s_add_u32 s36, s36, 0x1000000')
            srd(p, 20, 16, 36, 4096)
            for i in range(opt['dd']): p('buffer_store_dwordx4 %s, v%d, s[20:23], 0 offen offset:%d%s' % (vr(KB, 4), vL16, 1024 * i, ['', ' sc1', ' nt'][opt.get('dm2', 0)]))
            p('L_nodd:')
        if HP:
            assert P10 and PUB == 7
            hw0 = 6 if HP in (1, 3, 5) else 4
            p('s_cmp_lt_u32 s18, %d' % hw0)
            p('s_cbranch_scc1 L_nohp')
            if HP in (1, 3, 5): p('s_add_u32 s58, s3, %d' % opt.get('hd', 1))
            else:
                p('s_add_u32 s58, s3, s18')
                p('s_sub_u32 s58, s58, 3')
            p('s_and_b32 s58, s58, 7')
            HX = opt.get('hx', 0)
            if HX:
                p('s_bitcmp1_b32 s19, 0')
                if HX == 1: p('s_cbranch_scc1 L_nohp')
                p('s_cselect_b32 s58, s58, s3')
                p('s_or_b32 s36, s19, 1')
                p('s_lshl_b32 s36, s36, 21')
            else: p('s_lshl_b32 s36, s19, 21')
            if opt.get('hc', 0):
                p('s_cmp_eq_u32 s3, %d' % CC)
                p('s_cbranch_scc1 L_nohp')
            place(58, 8)
            p('s_or_b32 s36, s36, 0x%x' % sum(1 << pos[5 + i] for i in range(3)))
            if HP in (2, 4):
                p('s_sub_u32 s58, 7, s18')
                for b in range(2):
                    p('s_bfe_u32 s37, s58, 0x%x' % (0x10000 | b)); p('s_lshl_b32 s37, s37, %d' % pos[3 + b]); p('s_or_b32 s36, s36, s37')
            srd(p, 20, 6, 36, KSZ if HP in (1, 3, 5) else goff(3) + 2048)
            p('s_waitcnt lgkmcnt(0)')
            p('s_barrier')
            PNT = ['', ' nt', ' sc1', ' sc0'][opt.get('pnt', 0)]
            for u in ([3, 2, 1] if HP == 1 else [3, 2] if HP == 3 else [3, 2, 1, 0] if HP == 5 else [0]):
                for G in reversed(range(4 * u, 4 * u + 4)):
                    for h in (1, 0):
                        p('buffer_load_dwordx4 %s, v%d, s[20:23], %s offen offset:%d%s' % (vr(KB + 8 * G + 4 * h, 4), vV, sofs[goff(G) & ~4095], 1024 * h + (goff(G) & 4095), PNT))
            p('s_endpgm')
            p('L_nohp:')
        p('s_waitcnt lgkmcnt(0)')
        p('s_endpgm')
        p('L_last:')
        GA = A4 - 2
        R, ZR = TB + 16, PH
        oth = [w for w in range(8) if w != PUB]
        p('v_mov_b32 v%d, 0' % D2)
        p('v_mov_b32 v%d, s%d' % (GA + 1, sE))
        p('s_add_u32 s38, s57, 8192')
        p('v_and_b32 v%d, 15, v0' % vWA)
        p('v_bfe_u32 v%d, v0, 4, 1' % R)
        p('v_lshl_add_u32 v%d, v%d, 1, v%d' % (vWA, vWA, R))
        p('v_lshrrev_b32 v%d, 5, v0' % R)
        p('v_lshl_add_u32 v%d, v%d, 1, v%d' % (vWA, vWA, R))
        p('v_lshlrev_b32 v%d, 2, v%d' % (vWA, vWA))
        if opt.get('dv', 0) == 2: p('v_mul_f32 v%d, s%d, v%d' % (vEPS, sQ25, vEPS))
        if opt.get('lp', 0): p('s_setprio %d' % opt['lp'])
        p('s_waitcnt lgkmcnt(0)')
        if opt.get('sf', 0):
            assert P10
            for G in reversed(range(16 - opt['sf'], 16)):
                for o in range(0, 2048, opt.get('sg', 128)): p('s_load_dword s58, s[24:25], 0x%x' % (goff(G) + o))
        p('s_barrier')
        nt0 = NT
        if not opt.get('ntl', 1): NT = ''
        vissue0()
        NT = nt0
        TTm = opt.get('tt', 0)
        xtra = 0
        for bit, rs, so in ((1, 28, 's38'), (2, 28, 's57'), (4, 32, '0')):
            if TTm & bit:
                p('buffer_load_dword v%d, v%d, %s, %s offen' % (ZACC + xtra, D2, sr(rs, 4), so)); xtra += 1
        if PW:
            p('s_not_b32 s37, s%d' % sE)
            p('v_mov_b32 v%d, s37' % (ZACC + 1))
            p('buffer_store_dwordx4 %s, v%d, s[28:31], s38 offen' % (vr(ZACC, 4), vL16)); xtra += 1
        p('s_barrier')
        for i, w in enumerate(oth): p('ds_read_b64 %s, v%d offset:%d' % (vr(R + 2 * i, 2), vRA, 512 * w))
        for h in range(2): p('ds_read_b128 %s, v%d offset:%d' % (vr(ZR + 4 * h, 4), D2, 4096 + 16 * h))
        p('s_waitcnt lgkmcnt(2)')
        p('v_pk_add_f32 %s, %s, %s' % (vr(R, 2), vr(R, 2), vr(R + 2, 2)))
        p('v_pk_add_f32 %s, %s, %s' % (vr(R + 4, 2), vr(R + 4, 2), vr(R + 6, 2)))
        p('v_pk_add_f32 %s, %s, %s' % (vr(R + 8, 2), vr(R + 8, 2), vr(R + 10, 2)))
        p('v_pk_add_f32 %s, %s, %s' % (vr(R, 2), vr(R, 2), vr(R + 4, 2)))
        p('v_pk_add_f32 %s, %s, %s' % (vr(R + 8, 2), vr(R + 8, 2), vr(R + 12, 2)))
        p('s_waitcnt lgkmcnt(0)')
        p('v_pk_add_f32 %s, %s, %s' % (vr(A4, 2), vr(R, 2), vr(R + 8, 2)))
        p('v_pk_add_f32 %s, %s, %s' % (vr(ZR, 2), vr(ZR, 2), vr(ZR + 2, 2)))
        p('v_pk_add_f32 %s, %s, %s' % (vr(ZR + 4, 2), vr(ZR + 4, 2), vr(ZR + 6, 2)))
        p('v_pk_add_f32 %s, %s, %s' % (vr(ZR, 2), vr(ZR, 2), vr(ZR + 4, 2)))
        p('v_add_f32 v%d, v%d, v%d' % (GA, ZR, ZR + 1))
        vphase(xtra)
        p('s_cmp_eq_u32 s3, %d' % CC)
        stamp(1 if TS else 4)
        p('s_cbranch_scc1 L_cons')
        p('s_nop 5')
    elif not HELP: den_write()
    if WF == 1: weights(PH + 12)
    if sched: loadVg(cum[0], cum[1])
    if WF == 3 and not ORD: vphase()
    for u in range(0 if WF == 3 else 4):
        p.comment('V block %d' % u)
        if WF == 1 and u == 3:
            for t in range(8):
                p('v_mul_f32 v%d, v%d, v%d' % (KB + t, PQ, ACC + 4 * t))
                for r in range(1, 4): p('v_fmac_f32 v%d, v%d, v%d' % (KB + t, PQ + r, ACC + 4 * t + r))
                if t: p('v_mfma_f32_16x16x4_f32 %s, v%d, v%d, 0' % (vr(ACC + 4 * t - 4, 4), vE0, KB + t - 1))
            p('v_mfma_f32_16x16x4_f32 %s, v%d, v%d, 0' % (vr(ACC + 28, 4), vE0, KB + 7))
        left = 24 - 8 * u + (1 if XP > u + 1 else 0)
        if sched:
            left = 2 * (cum[min(u + 1, 3)] - 4 * (u + 1))
            assert left >= 0
        v_block(vbase[u], PH + 4 * u, u == 0, left, u == 3 and FW)
        if sched and u < 2: loadVg(cum[u + 1], cum[u + 2])
        if BS == 1: p('s_memrealtime %s' % sr(sST + 10 + 2 * u, 2))
        if u == 0 and HELP:
            p('s_cmp_lt_u32 s40, %d' % (8 + HW))
            p('s_cbranch_scc1 L_xok')
            p('s_mov_b32 s38, 0x40000')
            p('L_xpoll:')
            p('v_cmp_ne_u32 vcc, s%d, v%d' % (sE, GX + 3))
            p('s_cbranch_vccz L_xok')
            p('buffer_load_dwordx4 %s, v%d, %s, 0 offen sc1' % (vr(GX, 4), vL16, sr(RX, 4)))
            p('s_waitcnt vmcnt(0)')
            p('s_sub_u32 s38, s38, 1')
            p('s_cbranch_scc0 L_xpoll')
            p('L_xok:')
            p('v_add_f32 v%d, v%d, v%d' % (Dn, Dn, GX + 2))
            den_write()
    if not ORD:
        if not TS: stamp(3)
        N = KB
        if WF == 3:
            p('s_mov_b32 exec_hi, 0')
            p('ds_write_b128 v%d, %s' % (vWA, vr(A4, 4)))
            p('s_mov_b32 exec_hi, -1')
        elif WF:
            p('s_mov_b64 exec, 0xffff')
            for t in range(8):
                p('v_add_f32 v%d, v%d, v%d' % (N + t, ACC + 4 * t, ACC + 4 * t + 1))
                if t == 3: p('ds_write_b128 v%d, %s' % (vWA, vr(N, 4)))
            p('ds_write_b128 v%d, %s offset:16' % (vWA, vr(N + 4, 4)))
            p('s_mov_b64 exec, -1')
        else:
            num_fold(N)
            if HELP: p('v_pk_add_f32 %s, %s, %s' % (vr(N, 2), vr(N, 2), vr(GX, 2)))
            p('ds_write_b64 v%d, %s' % (vWA, vr(N, 2)))
        if BS:
            p('s_getreg_b32 s%d, hwreg(HW_REG_XCC_ID)' % (sST + 18))
            p('s_getreg_b32 s%d, hwreg(HW_REG_HW_ID)' % (sST + 19))
            p('s_lshl_b32 s36, s2, 3'); p('s_add_u32 s36, s36, s18'); p('s_lshl_b32 s36, s36, 7')
            p('s_add_u32 s36, s36, 0x8000000')
            srd(p, 20, 16, 36, 128)
            p('s_waitcnt lgkmcnt(0)')
            p('v_mov_b32 v%d, 0' % (KB + 47))
            for i in range(20): p('v_mov_b32 v%d, s%d' % (KB + 48 + i, sST + i))
            for i in range(5): p('buffer_store_dwordx4 %s, v%d, s[20:23], 0 offen offset:%d' % (vr(KB + 48 + 4 * i, 4), KB + 47, 16 * i))
        if LH:
            p('s_cmp_lt_u32 s%d, %d' % (40 if XP else 18, 0 if NOH == 2 else LH))
            p('s_cbranch_scc1 L_lh')
            p('L_lhdone:')
        if PW == 1:
            p('s_cmp_lg_u32 s18, %d' % PUB)
            p('s_cbranch_scc1 L_nopw')
            p('s_not_b32 s37, s%d' % sE)
            p('s_add_u32 s38, s57, 8192')
            p('v_mov_b32 v%d, s37' % (KB + 43))
            p('buffer_store_dwordx4 %s, v%d, s[28:31], s38 offen' % (vr(KB + 40, 4), vL16))
            p('L_nopw:')
        p('s_cmp_lg_u32 s18, %d' % PUB)
        p('s_waitcnt lgkmcnt(0)')
        p('s_barrier')
        p('s_cbranch_scc1 L_end')
        stamp(1 if TS else 4)
        R, ZR, GA = KB + 8, KB + 24, KB + 32
        p('v_mov_b32 v%d, 0' % D2)
        for w in range(8): p('ds_read_b64 %s, v%d offset:%d' % (vr(R + 2 * w, 2), vRA, 512 * w))
        for h in range(2): p('ds_read_b128 %s, v%d offset:%d' % (vr(ZR + 4 * h, 4), D2, 4096 + 16 * h))
        p('v_mov_b32 v%d, s%d' % (GA + 3, sE))
        p('s_add_u32 s38, s57, 8192')
        p('s_waitcnt lgkmcnt(6)')
        p('v_pk_add_f32 %s, %s, %s' % (vr(R, 2), vr(R, 2), vr(R + 2, 2)))
        p('v_pk_add_f32 %s, %s, %s' % (vr(R + 4, 2), vr(R + 4, 2), vr(R + 6, 2)))
        p('s_waitcnt lgkmcnt(2)')
        p('v_pk_add_f32 %s, %s, %s' % (vr(R + 8, 2), vr(R + 8, 2), vr(R + 10, 2)))
        p('v_pk_add_f32 %s, %s, %s' % (vr(R + 12, 2), vr(R + 12, 2), vr(R + 14, 2)))
        p('v_pk_add_f32 %s, %s, %s' % (vr(R, 2), vr(R, 2), vr(R + 4, 2)))
        p('v_pk_add_f32 %s, %s, %s' % (vr(R + 8, 2), vr(R + 8, 2), vr(R + 12, 2)))
        p('s_waitcnt lgkmcnt(0)')
        p('v_pk_add_f32 %s, %s, %s' % (vr(ZR, 2), vr(ZR, 2), vr(ZR + 2, 2)))
        p('v_pk_add_f32 %s, %s, %s' % (vr(ZR + 4, 2), vr(ZR + 4, 2), vr(ZR + 6, 2)))
        p('v_pk_add_f32 %s, %s, %s' % (vr(GA, 2), vr(R, 2), vr(R + 8, 2)))
        p('v_pk_add_f32 %s, %s, %s' % (vr(ZR, 2), vr(ZR, 2), vr(ZR + 4, 2)))
        p('s_cmp_eq_u32 s3, %d' % CC)
        p('v_add_f32 v%d, v%d, v%d' % (GA + 2, ZR, ZR + 1))
        p('s_cbranch_scc1 L_cons')
    if DUAL: p('buffer_store_dwordx4 %s, v%d, s[28:31], s38 offen' % (vr(GA, 4), vL16))
    if not opt.get('nos', 0): p('buffer_store_dwordx4 %s, v%d, s[28:31], s57 offen sc1' % (vr(GA, 4), vL16))
    if STAMP:
        stamp(2 if TS else 5)
        p('s_branch L_stamps')
    else:
        p('s_endpgm')
    p('L_cons:')
    stamp(2 if TS else 5)
    srcs = [s for s in range(8) if s != CC]
    TT = KB + 36
    M = TT
    G0 = KB + 48
    p('s_movk_i32 s40, 0x%x' % (0x2000 if DUAL else 0))
    p('s_movk_i32 s41, 0x%x' % (0x3000 if DUAL else 0x1000))
    p('s_mov_b32 s38, 0x40000')
    fN, fD, fT = (2, 0, 1) if ORD else (0, 2, 3)
    if not ORD: p('v_lshlrev_b32 v%d, 2, v0' % vK)
    DV = opt.get('dv', 0)
    if DV == 2 and not ORD: p('v_mul_f32 v%d, s%d, v%d' % (vEPS, sQ25, vEPS))
    GS = [G0 + 28 * i for i in range(PP)]
    SP = opt.get('sp', 0)
    SN, SD = TT + 2, TT + 1
    assert not SP or DV == 2
    def issue(G):
        for i, s in enumerate(srcs):
            p('buffer_load_dwordx4 %s, v%d, s[28:31], %s offen offset:%d sc1' % (vr(G + 4 * i, 4), vL16, 's41' if s >= 4 else 's40', 1024 * (s & 3)))
    def check(G, left, lab):
        for i in range(7):
            p('s_waitcnt vmcnt(%d)' % (left + 6 - i))
            if i == 0: p('v_xor_b32 v%d, s%d, v%d' % (M, sE, G + fT))
            else: p('v_bitop3_b32 v%d, v%d, s%d, v%d bitop3:0xbe' % (M, G + 4 * i + fT, sE, M))
            if SP:
                if i == 6: p('v_cmp_ne_u32 vcc, 0, v%d' % M)
                p('v_add_f32 v%d, v%d, v%d' % (SD, SD if i else GA + fD, G + 4 * i + fD))
                p('v_pk_add_f32 %s, %s, %s' % (vr(SN, 2), vr(SN if i else GA + fN, 2), vr(G + 4 * i + fN, 2)))
        if SP:
            p('v_cvt_pk_bf16_f32 v%d, 0, v%d' % (SD, SD))
            p('v_cvt_pk_bf16_f32 v%d, 0, v%d' % (SN, SN))
            p('v_fma_f32 v%d, v%d, s%d, v%d' % (SD, SD, sQ25, vEPS))
            p('v_cvt_pk_bf16_f32 v%d, 0, v%d' % (SN + 1, SN + 1))
            p('s_cbranch_vccz L_rdy0')
            return
        p('v_cmp_ne_u32 vcc, 0, v%d' % M)
        p('s_cbranch_vccz %s' % lab)
    for i in range(PP - 1): issue(GS[i])
    p('L_poll:')
    for i in range(PP):
        issue(GS[(i + PP - 1) % PP])
        if DUAL and i == 0:
            p('s_cmp_eq_u32 s38, 0x%x' % (0x40000 - N1))
            p('s_cselect_b32 s40, 0, s40')
            p('s_cselect_b32 s41, 0x1000, s41')
        check(GS[i], 7 * (PP - 1), 'L_rdy%d' % i)
    p('s_sub_u32 s38, s38, 1')
    p('s_cbranch_scc0 L_poll')
    if SP:
        p('L_rdy0:')
        stamp(4 if TS else 6)
        p('v_cvt_pk_bf16_f32 v%d, 0, v%d' % (SD, SD))
        p('v_mul_f32 v%d, s%d, v%d' % (SN, sQ25, SN))
        p('v_rcp_f32 v%d, v%d' % (SD, SD))
        p('v_mul_f32 v%d, s%d, v%d' % (SN + 1, sQ25, SN + 1))
        p('v_mul_f32 v%d, v%d, v%d' % (SN, SN, SD))
        p('v_mul_f32 v%d, v%d, v%d' % (SN + 1, SN + 1, SD))
        p('v_cvt_pk_bf16_f32 v%d, v%d, v%d' % (SN, SN, SN + 1))
        p('buffer_store_dword v%d, v%d, s[32:35], 0 offen' % (SN, vWA if ORD else vK))
    for i in reversed(range(0 if SP else PP)):
        p('L_rdy%d:' % i)
        stamp(4 if TS else 6)
        G = GS[i]
        GN, GD = GA + fN, GA + fD
        def n(a): return vr(G + 4 * a + fN, 2)
        def d(a): return G + 4 * a + fD
        p('v_add_f32 v%d, v%d, v%d' % (GD, GD, d(0)))
        for a, b in ((1, 2), (3, 4), (5, 6), (1, 3)): p('v_add_f32 v%d, v%d, v%d' % (d(a), d(a), d(b)))
        p('v_pk_add_f32 %s, %s, %s' % (vr(GN, 2), vr(GN, 2), n(0)))
        p('v_add_f32 v%d, v%d, v%d' % (GD, GD, d(5)))
        for a, b in ((1, 2), (3, 4), (5, 6)): p('v_pk_add_f32 %s, %s, %s' % (n(a), n(a), n(b)))
        p('v_add_f32 v%d, v%d, v%d' % (GD, GD, d(1)))
        p('v_pk_add_f32 %s, %s, %s' % (n(1), n(1), n(3)))
        p('v_pk_add_f32 %s, %s, %s' % (vr(GN, 2), vr(GN, 2), n(5)))
        if PP > 1:
            p('v_pk_add_f32 %s, %s, %s' % (vr(GN, 2), vr(GN, 2), n(1)))
            if i: p('s_branch L_fin')
    if not SP:
        if PP > 1: p('L_fin:')
        Dn = GD
        p('v_cvt_pk_bf16_f32 v%d, 0, v%d' % (Dn, Dn))
        if PP == 1: p('v_pk_add_f32 %s, %s, %s' % (vr(GN, 2), vr(GN, 2), n(1)))
        if DV == 2: p('v_fma_f32 v%d, v%d, s%d, v%d' % (Dn, Dn, sQ25, vEPS))
        else: p('v_add_f32 v%d, v%d, v%d' % (Dn, Dn, vEPS))
        p('v_cvt_pk_bf16_f32 v%d, 0, v%d' % (GN, GN))
        p('v_cvt_pk_bf16_f32 v%d, 0, v%d' % (GN + 1, GN + 1))
        p('v_cvt_pk_bf16_f32 v%d, 0, v%d' % (Dn, Dn))
        if DV == 2:
            p('v_mul_f32 v%d, s%d, v%d' % (GN, sQ25, GN))
            p('v_rcp_f32 v%d, v%d' % (Dn, Dn))
            p('v_mul_f32 v%d, s%d, v%d' % (GN + 1, sQ25, GN + 1))
            p('v_mul_f32 v%d, v%d, v%d' % (GN, GN, Dn))
            p('v_mul_f32 v%d, v%d, v%d' % (GN + 1, GN + 1, Dn))
        elif DV:
            p('v_mul_f32 v%d, 0.5, v%d' % (Dn, Dn))
            p('v_pk_mul_f32 %s, %s, 0.5 op_sel_hi:[1,0]' % (vr(GN, 2), vr(GN, 2)))
            p('v_mul_f32 v%d, 0.5, v%d' % (Dn, Dn))
            p('v_pk_mul_f32 %s, %s, 0.5 op_sel_hi:[1,0]' % (vr(GN, 2), vr(GN, 2)))
            p('v_rcp_f32 v%d, v%d' % (Dn, Dn))
            p('v_pk_mul_f32 %s, %s, %s op_sel_hi:[1,0]' % (vr(GN, 2), vr(GN, 2), vr(Dn, 2)))
        else: division2(p, GN, GN + 1, Dn, TT)
        p('v_cvt_pk_bf16_f32 v%d, v%d, v%d' % (GN, GN, GN + 1))
        p('buffer_store_dword v%d, v%d, s[32:35], 0 offen' % (GN, vWA if ORD else vK))
    p('s_mov_b64 exec, 1')
    p('global_store_dword v%d, v%d, s[10:11]' % (D2, GA + fT))
    p('s_mov_b64 exec, -1')
    if STAMP:
        if TS: stamp(5)
        p('L_stamps:')
        p('s_waitcnt vmcnt(0)')
        stamp(6)
        p('s_getreg_b32 s%d, hwreg(HW_REG_XCC_ID)' % (sST + 14))
        p('s_getreg_b32 s%d, hwreg(HW_REG_HW_ID)' % (sST + 15))
        p('s_lshl_b32 s36, s2, 6')
        p('s_add_u32 s36, s36, 0x8000000')
        srd(p, 20, 16, 36, 64)
        for i in range(16): p('v_mov_b32 v%d, s%d' % (KB + 48 + i, sST + i))
        for i in range(4): p('buffer_store_dwordx4 %s, v%d, s[20:23], 0 offen offset:%d' % (vr(KB + 48 + 4 * i, 4), D2, 16 * i))
    p('L_end:')
    p('s_endpgm')
    if LH:
        p('L_lh:')
        p('s_waitcnt lgkmcnt(0)')
        p('s_bitcmp1_b32 s2, 0')
        p('s_cbranch_scc1 L_recv')
        p('s_add_u32 s37, s39, 256')
        srd(p, R3K, 8, 37, 256)
        for kk in range(4): p('buffer_load_dwordx4 %s, v%d, %s, 0 offen offset:%d' % (vr(PH + 4 * kk, 4), vG, sr(R3K, 4), 64 * kk))
        p('s_xor_b32 s37, s36, 0x%x' % ((1 << 21) | (1 << pos[5]) | (1 << pos[6]) | (1 << pos[7])))
        srd(p, 20, 4, 37, KSZ)
        loadKblk(3, KB, 20)
        srd(p, 24, 6, 37, KSZ)
        loadVblk(3, KB + 32, 24)
        xaddr(8192)
        p('s_add_u32 s%d, s%d, 0x%08x' % (sE2, sE2, TAGK))
        p('s_waitcnt vmcnt(16)')
        phi_q(p, PH, OM, T, SQ, PQ, S0, vONE, vEPS)
        p('s_waitcnt vmcnt(8)')
        k_block(KB, PH)
        den_fold(1, GX + 2, vDA)
        v_block(KB + 32, PH, True, 0, False)
        num_fold(KB)
        p('v_mov_b32 v%d, s%d' % (GX + 3, sE2))
        p('v_mov_b32 v%d, v%d' % (GX, KB))
        p('v_mov_b32 v%d, v%d' % (GX + 1, KB + 1))
        p('buffer_store_dwordx4 %s, v%d, %s, 0 offen sc1' % (vr(GX, 4), vL16, sr(RX, 4)))
        p('s_branch L_lhdone')
        p('L_recv:')
        if not XP: xaddr(0)
        p('s_mov_b32 s38, 0x40000')
        if XP: p('s_branch L_xchk')
        p('L_xpoll:')
        p('buffer_load_dwordx4 %s, v%d, %s, 0 offen sc1' % (vr(GX, 4), vL16, sr(RX, 4)))
        p('s_waitcnt vmcnt(0)')
        p('L_xchk:')
        p('v_cmp_ne_u32 vcc, s%d, v%d' % (sE, GX + 3))
        p('s_cbranch_vccz L_xok')
        p('s_sub_u32 s38, s38, 1')
        p('s_cbranch_scc0 L_xpoll')
        p('L_xok:')
        p('v_pk_add_f32 %s, %s, %s' % (vr(KB, 2), vr(KB, 2), vr(GX, 2)))
        p('v_add_f32 v%d, v%d, v%d' % (vT0, vT0, GX + 2))
        p('ds_write_b64 v%d, %s' % (vWA, vr(KB, 2)))
        p('s_mov_b64 exec, 1')
        p('ds_write_b32 v%d, v%d' % (vDA, vT0))
        p('s_mov_b64 exec, -1')
        p('s_branch L_lhdone')
    return p, (L_Q + 4096 if opt.get('ls', 0) else L_Q + 2048 if OLDS else 4160)

def build(opt):
    m, lds = main_kernel(opt)
    s = HDR
    if 'diag' in opt:
        s += '; @launch kernel=%s grid=(256,1,1) block=(512,1,1) lds=%d\n' % (NAME, lds)
        s += '; @launch kernel=rfa_diag_kernel grid=(1,1,1) block=(256,1,1) lds=64\n'
    else:
        s += '; @launch grid=(256,1,1) block=(512,1,1) lds=%d\n' % lds
    s += '.amdgcn_target "amdgcn-amd-amdhsa--gfx950"\n.text\n'
    s += '.globl %s\n.p2align 8\n.type %s,@function\n%s:\n' % (NAME, NAME, NAME)
    s += m.finalize() + '\n'
    sys.stderr.write('%s: %d instr, %d nop states\n' % (NAME, len(m.out), m.nops))
    if 'diag' in opt:
        n = 'rfa_diag_kernel'
        s += '.globl %s\n.p2align 8\n.type %s,@function\n%s:\n' % (n, n, n) + diag_kernel(opt).finalize() + '\n'
    s += '.section .rodata,"a"\n.p2align 6\n' + kd(NAME, 256, 102)
    if 'diag' in opt: s += '.p2align 6\n' + kd('rfa_diag_kernel', 16)
    return s

if __name__ == '__main__':
    opt = {k: (v if k in ('p10', 'po') else int(v)) for k, v in (kv.split('=') for kv in sys.argv[2:])}
    open(sys.argv[1], 'w').write(build(opt))
```

```python
import sys, struct
from asmlib import Prog
from gen1 import vr, sr, srd, kd, HDR, consts, scale_tiles, exp_phase, phi_q, EPS, sMASK, sSC, sL2E, sQ25, sSELLO, sSELHI
from gen2 import diag_kernel

NAME = 'standalone__linear_kernel_rfa__decode_kernel'
WS_E = 0x80000
WS_X = 0x100000
TAGK = 0x9E3779B9
L_OM, L_Q = 4160, 4160 + 4096

def division2(p, N0, N1, Dn, T):
    R = [(N0, T, 'vcc'), (N1, T + 5, 's[58:59]')]
    for N, t, c in R: p('v_div_scale_f32 v%d, s[60:61], v%d, v%d, v%d' % (t + 1, Dn, Dn, N))
    for N, t, c in R: p('v_div_scale_f32 v%d, %s, v%d, v%d, v%d' % (t, c, N, Dn, N))
    for N, t, c in R: p('v_rcp_f32 v%d, v%d' % (t + 2, t + 1))
    for N, t, c in R: p('v_fma_f32 v%d, -v%d, v%d, 1.0' % (t + 3, t + 1, t + 2))
    for N, t, c in R: p('v_fmac_f32 v%d, v%d, v%d' % (t + 2, t + 3, t + 2))
    for N, t, c in R: p('v_mul_f32 v%d, v%d, v%d' % (t + 4, t, t + 2))
    for N, t, c in R: p('v_fma_f32 v%d, -v%d, v%d, v%d' % (t + 3, t + 1, t + 4, t))
    for N, t, c in R: p('v_fmac_f32 v%d, v%d, v%d' % (t + 4, t + 3, t + 2))
    for N, t, c in R: p('v_fma_f32 v%d, -v%d, v%d, v%d' % (t + 3, t + 1, t + 4, t))
    for N, t, c in R:
        if c != 'vcc': p('s_mov_b64 vcc, %s' % c)
        p('v_div_fmas_f32 v%d, v%d, v%d, v%d' % (t + 3, t + 3, t + 2, t + 4))
    for N, t, c in R: p('v_div_fixup_f32 v%d, v%d, v%d, v%d' % (N, t + 3, Dn, N))

def main_kernel(opt):
    p = Prog()
    STAMP = opt.get('stamp', 0)
    XMAP = opt.get('xmap', 0)
    SQM = opt.get('sqm', 1)
    FW = opt.get('fw', 1)
    PRIO = opt.get('prio', 1)
    NT = ['', ' nt'][opt.get('nt', 1)]
    PUB = opt.get('pub', 0)
    CC = opt.get('cc', 0)
    TS = opt.get('ts', 0)
    OLDS = opt.get('olds', 1)
    DUAL = opt.get('dual', 1)
    N1 = opt.get('n1', 48)
    HELP = opt.get('help', 0)
    HW = 8 - HELP
    VT = opt.get('vt', 0)
    PW = opt.get('pw', 0)
    BS = opt.get('bs', 0)
    EL = opt.get('el', 1)
    NG = opt.get('ng', 4)
    TH = opt.get('th', 0)
    HB = opt.get('hb', 0)
    WF = opt.get('wf', 0)
    PP = opt.get('pp', 1)
    ORD = opt.get('ord', 0)
    FA = opt.get('fa', 0)
    VO = opt.get('vo', 0)
    VORD = [sum(((t >> i) & 1) << int(c) for i, c in enumerate(('%04d' % VO)[::-1])) for t in range(16)] if VO else list(range(16))
    assert sorted(VORD) == list(range(16)) and (WF == 3 or not VO)
    if ORD:
        assert WF == 3
        PUB = opt.get('pub', 7)
    VI = '%04d' % opt.get('vi', 0)
    DM = opt.get('dm', 0)
    NOH = opt.get('noh', 0)
    XP = opt.get('xp', 0)
    LH = opt.get('lh', 0)
    THW = opt.get('thw', 4)
    OML = opt.get('oml', 0)
    NE = opt.get('ne', 4)
    TAB = opt.get('tab', 0)
    assert not (HELP and (TAB or XMAP))
    vK, vL16, vV, vEPS, vONE, vWA, vRA = 1, 2, 3, 4, 5, 6, 7
    OM, KB, TB, ACC, ZACC, PH, X = 8, 24, 152, 184, 216, 220, 236
    ONES, PQ, vG, vT0, vT1, vDA, vW, GX = X, X + 4, X + 8, X + 9, X + 10, X + 11, X + 12, X + 16
    sST, sE, sE2 = 64, 62, 63
    def stamp(i):
        if STAMP:
            p('s_memrealtime %s' % sr(sST + 2 * i, 2)); p('s_waitcnt lgkmcnt(0)')
    p('s_load_dwordx4 s[4:7], s[0:1], 8')
    p('s_load_dwordx2 s[8:9], s[0:1], 0')
    p('s_load_dwordx4 s[12:15], s[0:1], 24')
    p('s_load_dwordx2 s[16:17], s[0:1], 48')
    if STAMP or BS: p('s_memrealtime %s' % sr(sST, 2))
    p('s_cmp_ge_u32 s2, 256')
    p('s_cbranch_scc1 L_end')
    if PRIO: p('s_setprio 3')
    p('v_lshrrev_b32 v9, 6, v0')
    p('v_and_b32 v0, 63, v0')
    if XMAP == 0:
        HM = [int(c) for c in '%05d' % opt.get('hm', 43210)][::-1]
        if HM == [0, 1, 2, 3, 4]: p('s_and_b32 s19, s2, 31')
        elif HM == [3, 4, 0, 1, 2]:
            p('s_and_b32 s19, s2, 7'); p('s_bfe_u32 s3, s2, 0x20003'); p('s_lshl2_add_u32 s19, s19, s3')
        else:
            p('s_mov_b32 s19, 0')
            for i, b in enumerate(HM):
                p('s_bfe_u32 s3, s2, 0x%x' % (0x10000 | b)); p('s_lshl_b32 s3, s3, %d' % i); p('s_or_b32 s19, s19, s3')
        p('s_lshr_b32 s3, s2, 5')
    elif XMAP == 1:
        p('s_lshr_b32 s19, s2, 3'); p('s_and_b32 s3, s2, 7')
    else:
        p('s_lshr_b32 s19, s2, 3'); p('s_xor_b32 s3, s2, s19'); p('s_and_b32 s3, s3, 7')
    p('v_readfirstlane_b32 s18, v9')
    P10 = opt.get('p10')
    if P10:
        pos = {int(c, 16): 20 - i for i, c in enumerate(P10)}
        assert sorted(pos) == list(range(1, 11)) and not HELP
        p('s_lshl_b32 s36, s19, 21')
        def place(reg, srcs):
            i = 0
            while i < 3:
                n = 1
                while i + n < 3 and pos[srcs + i + n] == pos[srcs + i] + n: n += 1
                if n == 3: p('s_lshl_b32 s37, s%d, %d' % (reg, pos[srcs]))
                else:
                    p('s_bfe_u32 s37, s%d, 0x%x' % (reg, (n << 16) | i)); p('s_lshl_b32 s37, s37, %d' % pos[srcs + i])
                p('s_or_b32 s36, s36, s37')
                i += n
        place(3, 8); place(18, 5)
        def goff(G): return sum(((G >> b) & 1) << pos[1 + b] for b in range(4))
    else:
        p('s_lshl_b32 s36, s19, 21')
        p('s_lshl_b32 s37, s3, 18')
        p('s_add_u32 s36, s36, s37')
        PERM = [int(c) for c in '%08d' % opt.get('perm', 65271340)][::-1]
        assert sorted(PERM) == list(range(8)) and PERM[0] == 0
        wpos = [10 + PERM.index(5 + i) for i in range(3)]
        if wpos[1] == wpos[0] + 1 and wpos[2] == wpos[0] + 2:
            p('v_lshlrev_b32 v%d, %d, v9' % (vW, wpos[0]))
        elif wpos[1] == wpos[0] + 1:
            p('v_lshrrev_b32 v13, 2, v9'); p('v_and_b32 v9, 3, v9')
            p('v_lshlrev_b32 v9, %d, v9' % wpos[0]); p('v_lshl_add_u32 v%d, v13, %d, v9' % (vW, wpos[2]))
        else:
            p('v_bfe_u32 v13, v9, 1, 1'); p('v_lshrrev_b32 v14, 2, v9'); p('v_and_b32 v9, 1, v9')
            p('v_lshlrev_b32 v9, %d, v9' % wpos[0]); p('v_lshl_add_u32 v9, v13, %d, v9' % wpos[1]); p('v_lshl_add_u32 v%d, v14, %d, v9' % (vW, wpos[2]))
        def goff(G):
            return sum(((2 * G >> src) & 1) << (10 + ob) for ob, src in enumerate(PERM) if src < 5)
    sofs = {0: '0'}
    for G in range(16):
        a = goff(G) & ~4095
        if a not in sofs: sofs[a] = 's%d' % ([41, 42, 43, 44, 45, 46, 47, 80, 81, 82, 83, 84, 85, 86, 87][len(sofs) - 1])
    p('v_lshrrev_b32 v10, 4, v0')
    p('v_lshlrev_b32 v%d, 4, v10' % vG)
    p('v_and_b32 v11, 1, v0')
    p('v_bfe_u32 v12, v0, 2, 2')
    p('v_lshl_add_u32 v11, v11, 2, v12')
    p('v_lshl_add_u32 v%d, v11, 8, v%d' % (vK, vG))
    p('v_bfe_u32 v12, v0, 1, 1')
    p('v_lshl_add_u32 v%d, v12, 6, v%d' % (vK, vK))
    if TAB:
        p('s_load_dwordx2 s[58:59], s[0:1], 40')
        p('s_waitcnt lgkmcnt(0)')
        p('s_load_dwordx16 s[80:95], s[58:59], 0')
        p('s_lshl_b32 s37, s18, 2'); p('s_add_u32 s37, s37, 64'); p('s_load_dword s60, s[58:59], s37')
        p('s_lshl_b32 s37, s3, 2'); p('s_add_u32 s37, s37, 96'); p('s_load_dword s61, s[58:59], s37')
        p('s_lshl_b32 s37, s19, 2'); p('s_add_u32 s37, s37, 128'); p('s_load_dword s19, s[58:59], s37')
        p('s_waitcnt lgkmcnt(0)')
        p('s_add_u32 s60, s60, s61')
        p('v_mov_b32 v%d, s60' % vW)
        p('s_lshl_b32 s36, s19, 21')
        sofs = {4096 * G: 's%d' % (80 + G) for G in range(16)}
        def goff(G): return 4096 * G
    if not P10: p('v_add_u32 v%d, v%d, v%d' % (vK, vK, vW))
    for a, r in sofs.items():
        if a and not TAB: p('s_mov_b32 %s, %d' % (r, a))
    if opt.get('po'):
        new = {pos[1 + i]: int(c, 16) for i, c in enumerate(opt['po'])}
        assert sorted(new) == sorted(new.values()) and min(new) >= 12
        p('s_bitcmp%d_b32 s2, %d' % (opt.get('pe', 1), opt.get('pb', 0)))
        for a, r in sofs.items():
            b = sum(1 << new.get(i, i) for i in range(32) if a >> i & 1)
            if a != b: p('s_cmov_b32 %s, %d' % (r, b))
    KSZ = 0x200000 if TAB else (goff(15) + 2048 if P10 else 0x40000)
    if P10: vV = vL16
    p('v_and_b32 v8, 15, v0')
    p('v_lshlrev_b32 v%d, 4, v0' % vL16)
    p('v_lshl_add_u32 v%d, v8, 8, v%d' % (vT1, vG))
    p('s_lshl_b32 s39, s19, 8')
    p('s_mov_b32 s22, 0x%x' % KSZ)
    p('s_mov_b32 s23, 0x00020000')
    def loadKblk(u, dst, R=20):
        for G in range(4 * u, 4 * u + 4):
            for h in range(2):
                p('buffer_load_dwordx4 %s, v%d, %s, %s offen offset:%d%s' % (vr(dst + 8 * (G & 3) + 4 * h, 4), X + 13 if DM and R == 88 else vK, sr(20 if DM and R == 88 else R, 4), sofs[goff(G) & ~4095], 128 * h + (goff(G) & 4095), NT))
    def loadKg(G0, G1, R=20):
        for G in range(G0, G1):
            for h in range(2):
                p('buffer_load_dwordx4 %s, v%d, %s, %s offen offset:%d%s' % (vr(KB + 8 * G + 4 * h, 4), vK, sr(R, 4), sofs[goff(G) & ~4095], 128 * h + (goff(G) & 4095), NT))
    def loadVg(G0, G1):
        for G in range(G0, G1):
            for h in range(2):
                p('buffer_load_dwordx4 %s, v%d, %s, %s offen offset:%d%s' % (vr(KB + 8 * G + 4 * h, 4), vV, sr(24, 4), sofs[goff(G) & ~4095], 1024 * h + (goff(G) & 4095), NT))
    def loadVblk(u, dst, R=24):
        for G in range(4 * u, 4 * u + 4):
            for h in range(2):
                p('buffer_load_dwordx4 %s, v%d, %s, %s offen offset:%d%s' % (vr(dst + 8 * (G & 3) + 4 * h, 4), X + 14 if DM and R == 92 else vV, sr(24 if DM and R == 92 else R, 4), sofs[goff(G) & ~4095], 1024 * h + (goff(G) & 4095), NT))
    T, SQ, S0 = ACC, ACC + 8, ACC + 20
    RW = [TB + 6 * G for G in range(4)]
    SW_ = [ACC + 8 + 6 * G for G in range(4)]
    SQ4 = TB + 24
    def k_block(kb, ph, hook=None):
        pend = []
        for G in range(4):
            for h in range(2):
                ks = [kb + 8 * G + 4 * h + i for i in range(4)]
                for i, k in enumerate(ks): p('v_lshlrev_b32 v%d, 16, v%d' % (T + 2 * i, k))
                for i, k in enumerate(ks): p('v_and_b32 v%d, s%d, v%d' % (T + 2 * i + 1, sMASK, k))
                for x in pend: p(x)
                pend = []
                for i, k in enumerate(ks): p('v_pk_mul_f32 %s, %s, %s' % (vr(T + 2 * i, 2), vr(T + 2 * i, 2), sr(sSC, 2)))
                for i, k in enumerate(ks): p('v_cvt_pk_bf16_f32 v%d, v%d, v%d' % (k, T + 2 * i, T + 2 * i + 1))
                for i, k in enumerate(ks):
                    pend.append('v_dot2_f32_bf16 v%d, v%d, v%d, %s' % (SQ4 + G, k, k, '0' if (h == 0 and i == 0) else 'v%d' % (SQ4 + G)))
                pend.append('v_mfma_f32_16x16x32_bf16 %s, %s, %s, %s' % (vr(RW[G] + 2, 4), vr(ks[0], 4), vr(OM + 8 * h, 4), '0' if h == 0 else vr(RW[G] + 2, 4)))
                if h == 0 and G > 0:
                    g1 = G - 1
                    pend.append('v_mfma_f32_16x16x4_f32 %s, v%d, v%d, 0' % (vr(SW_[g1] + 2, 4), SQ4 + g1, vONE))
                    for hh in range(2):
                        pend.append('v_mfma_f32_16x16x32_bf16 %s, %s, %s, %s' % (vr(RW[g1], 4), vr(kb + 8 * g1 + 4 * hh, 4), vr(OM + 8 * hh + 4, 4), vr(RW[g1], 4)))
                if h == 1 and G > 0 and SQM:
                    g1 = G - 1
                    pend.append('v_mfma_f32_16x16x4_f32 %s, v%d, v%d, %s' % (vr(SW_[g1], 4), SQ4 + g1, vONE, vr(SW_[g1], 4)))
        for x in pend: p(x)
        p('v_mfma_f32_16x16x4_f32 %s, v%d, v%d, 0' % (vr(SW_[3] + 2, 4), SQ4 + 3, vONE))
        def first_round(Gs):
            for G in Gs:
                for b in range(2): p('v_cvt_pk_bf16_f32 v%d, 0, v%d' % (RW[G] + 2 + b, RW[G] + 2 + b))
            for G in Gs:
                if not SQM: p('v_pk_add_f32 %s, %s, %s' % (vr(SW_[G] + 2, 2), vr(SW_[G] + 2, 2), vr(SW_[G] + 4, 2)))
                for b in range(2): p('v_cvt_pk_bf16_f32 v%d, 0, v%d' % (SW_[G] + 2 + b, SW_[G] + 2 + b))
        first_round([0, 1])
        for hh in range(2):
            p('v_mfma_f32_16x16x32_bf16 %s, %s, %s, %s' % (vr(RW[3], 4), vr(kb + 24 + 4 * hh, 4), vr(OM + 8 * hh + 4, 4), vr(RW[3], 4)))
        if SQM: p('v_mfma_f32_16x16x4_f32 %s, v%d, v%d, %s' % (vr(SW_[3], 4), SQ4 + 3, vONE, vr(SW_[3], 4)))
        if hook: hook()
        first_round([2])
        regs = [(RW[G] + 2 + b, SW_[G] + 2 + b) for G in range(4) for b in range(2)]
        for a, b in regs[:6]: p('v_fma_f32 v%d, v%d, -0.5, v%d' % (a, b, a))
        for a, b in regs[:6]: p('v_cvt_pk_bf16_f32 v%d, 0, v%d' % (a, a))
        first_round([3])
        for a, b in regs[6:]: p('v_fma_f32 v%d, v%d, -0.5, v%d' % (a, b, a))
        for a, b in regs[6:]: p('v_cvt_pk_bf16_f32 v%d, 0, v%d' % (a, a))
        for a, b in regs: p('v_mul_f32 v%d, s%d, v%d' % (a, sL2E, a))
        for a, b in regs: p('v_exp_f32 v%d, v%d' % (a, a))
        for a, b in regs: p('v_cvt_pk_bf16_f32 v%d, 0, v%d' % (a, a))
        for a, b in regs: p('v_fma_f32 v%d, v%d, s%d, v%d' % (a, a, sQ25, vEPS))
        for G in range(4):
            p('v_cvt_pk_bf16_f32 v%d, v%d, v%d' % (ph + G, RW[G] + 2, RW[G] + 3))
    def v_block(vb, ph, first, left, fine):
        def vmf(t, tb):
            p('v_mfma_f32_16x16x32_bf16 %s, %s, %s, %s' % (vr(ACC + 4 * t, 4), vr(ph, 4), vr(tb, 4), '0' if first else vr(ACC + 4 * t, 4)))
        def prm(w, q, hi):
            p('v_perm_b32 v%d, v%d, v%d, s%d' % (TB + 8 * w + 4 * hi + q, vb + 4 * (2 * q + 1) + w, vb + 4 * (2 * q) + w, sSELHI if hi else sSELLO))
        if fine:
            for q in range(4):
                p('s_waitcnt vmcnt(%d)' % (left + 6 - 2 * q))
                for w in range(4):
                    prm(w, q, 0); prm(w, q, 1)
                    if q == 3 and w > 0:
                        for b in range(2): vmf(2 * (w - 1) + b, TB + 8 * (w - 1) + 4 * b)
        else:
            if left is not None: p('s_waitcnt vmcnt(%d)' % left)
            for w in range(4):
                for hi in range(2):
                    for q in range(4): prm(w, q, hi)
                if w > 0:
                    for b in range(2): vmf(2 * (w - 1) + b, TB + 8 * (w - 1) + 4 * b)
        for b in range(2): vmf(6 + b, TB + 24 + 4 * b)
    def den_fold(nb, Dn, D2):
        for u in range(nb):
            p('v_mfma_f32_16x16x32_bf16 %s, %s, %s, %s' % (vr(ZACC, 4), vr(PH + 4 * u, 4), vr(ONES, 4), '0' if u == 0 else vr(ZACC, 4)))
        p('v_mul_f32 v%d, v%d, v%d' % (Dn, PQ, ZACC))
        for r in range(1, 4): p('v_fmac_f32 v%d, v%d, v%d' % (Dn, PQ + r, ZACC + r))
        for sw in ('v_permlane32_swap_b32', 'v_permlane16_swap_b32'):
            p('v_mov_b32 v%d, v%d' % (D2, Dn))
            p('%s v%d, v%d' % (sw, Dn, D2))
            p('v_add_f32 v%d, v%d, v%d' % (Dn, Dn, D2))
    def num_fold(N):
        for t in range(8):
            p('v_mul_f32 v%d, v%d, v%d' % (N + t, PQ, ACC + 4 * t))
            for r in range(1, 4): p('v_fmac_f32 v%d, v%d, v%d' % (N + t, PQ + r, ACC + 4 * t + r))
        for t in range(4): p('v_permlane32_swap_b32 v%d, v%d' % (N + t, N + t + 4))
        for t in range(4): p('v_add_f32 v%d, v%d, v%d' % (N + t, N + t, N + t + 4))
        for t in range(2): p('v_permlane16_swap_b32 v%d, v%d' % (N + t, N + t + 2))
        for t in range(2): p('v_add_f32 v%d, v%d, v%d' % (N + t, N + t, N + t + 2))
    def setup_consts():
        consts(p)
        p('v_mov_b32 v%d, 0x%08x' % (vEPS, EPS))
        p('v_mov_b32 v%d, 1.0' % vONE)
        if WF != 3:
            for i in range(4): p('v_mov_b32 v%d, 0x3f803f80' % (ONES + i))
    def eload(addr=True, load=True):
        if opt.get('e7', 0) and addr != 'now': return
        if addr:
            p('s_lshl_b32 s37, s19, 7')
            p('s_add_u32 s37, s37, 0x%x' % WS_E)
            p('s_add_u32 s10, s16, s37')
            p('s_addc_u32 s11, s17, 0')
        if load: p('s_load_dword s%d, s[10:11], 0 glc' % sE)
    R3K, R3V, RX = (88, 92, 96) if HELP or LH else (20, 24, 96)
    if LH:
        assert P10 and not OLDS and not HELP and not XMAP and 'hm' not in opt
        HW = 8 - LH
    def help_setup():
        p('s_and_b32 s37, s2, 1')
        p('s_lshl_b32 s37, s37, 3')
        p('s_add_u32 s40, s37, s18')
        p('s_cmp_ge_u32 s40, %d' % (8 + HW))
        p('s_cselect_b32 s%d, 0, 0x%x' % (R3K + 2, KSZ))
        p('s_mov_b32 s%d, s20' % R3K); p('s_mov_b32 s%d, s21' % (R3K + 1)); p('s_mov_b32 s%d, s23' % (R3K + 3))
    def xaddr(plus):
        p('s_lshl_b32 s37, s2, 3')
        p('s_add_u32 s37, s37, s18')
        p('s_lshl_b32 s37, s37, 10')
        p('s_add_u32 s37, s37, 0x%x' % (WS_X + plus))
        srd(p, RX, 16, 37, 1024)
    def helper():
        p('s_sub_u32 s37, s40, %d' % HW)
        p('s_cmp_ge_u32 s37, %d' % HELP)
        p('s_cbranch_scc1 L_nohelp')
        if OLDS < 2: p('s_load_dword s%d, s[10:11], 128 glc' % sE2)
        if not OLDS:
            p('s_add_u32 s37, s39, 256')
            srd(p, 32, 8, 37, 256)
            for kk in range(4): p('buffer_load_dwordx4 %s, v%d, s[32:35], 0 offen offset:%d' % (vr(PH + 4 * kk, 4), vG, 64 * kk))
        def hloads():
            p('v_add_u32 v%d, v%d, v%d' % (vV, vL16, vW))
            p('s_add_u32 s37, s36, 0x200000')
            srd(p, 24, 4, 37, KSZ)
            loadKblk(3, KB, 24)
            srd(p, 24, 6, 37, KSZ)
            loadVblk(3, KB + 32, 24)
        if OLDS == 2 and HB:
            hloads()
            share(16)
            p('s_barrier')
        elif OLDS == 2:
            share(0)
            p('s_barrier')
            hloads()
        else: hloads()
        if OLDS == 2 and PRIO: p('s_setprio 2')
        setup_consts()
        xaddr(8192)
        if OLDS:
            if OLDS == 1:
                p('s_waitcnt lgkmcnt(0)')
                p('s_barrier')
            for kk in range(4): p('ds_read_b128 %s, v%d offset:%d' % (vr(OM + 4 * kk, 4), vL16, L_OM + 1024 * kk))
            for kk in range(4): p('ds_read_b128 %s, v%d offset:%d' % (vr(PH + 4 * kk, 4), vG, L_Q + 256 + 64 * kk))
        p('s_waitcnt lgkmcnt(0)')
        if OLDS == 2: p('s_load_dword s%d, s[10:11], 128 glc' % sE2)
        else: p('s_add_u32 s%d, s%d, 0x%08x' % (sE2, sE2, TAGK))
        if not OLDS: p('s_waitcnt vmcnt(16)')
        phi_q(p, PH, OM, T, SQ, PQ, S0, vONE, vEPS)
        p('s_waitcnt vmcnt(8)')
        k_block(KB, PH)
        den_fold(1, GX + 2, vT1)
        v_block(KB + 32, PH, True, 0, False)
        num_fold(KB)
        if OLDS == 2:
            p('s_waitcnt lgkmcnt(0)')
            p('s_add_u32 s%d, s%d, 0x%08x' % (sE2, sE2, TAGK))
        p('v_mov_b32 v%d, s%d' % (GX + 3, sE2))
        p('v_mov_b32 v%d, v%d' % (GX, KB))
        p('v_mov_b32 v%d, v%d' % (GX + 1, KB + 1))
        p('buffer_store_dwordx4 %s, v%d, %s, 0 offen sc1' % (vr(GX, 4), vL16, sr(RX, 4)))
        if OLDS == 1: p('s_branch L_kload')
        if OLDS == 2: p('s_branch L_kl2')
        p('L_nohelp:')
    def share(left):
        p('s_waitcnt vmcnt(%d)' % (left + 1))
        p('ds_write_b128 v%d, %s' % (vT0, vr(OM, 4)))
        p('s_waitcnt vmcnt(%d)' % left)
        p('ds_write_b128 v%d, %s offset:%d' % (vL16, vr(OM + 4, 4), L_Q))
        p('s_waitcnt lgkmcnt(0)')
    if OLDS >= 2:
        assert not (HELP and (OLDS == 3 or NG > 12))
        def fetch():
            srd(p, 28, 12, None, 4096)
            p('buffer_load_dwordx4 %s, v%d, s[28:31], s38 offen' % (vr(OM, 4), vT1))
            if HELP:
                p('s_and_b32 s37, s39, 0xfffffe00')
                srd(p, 32, 8, 37, 512)
            else: srd(p, 32, 8, 39, 256)
            p('buffer_load_dwordx4 %s, v%d, s[32:35], 0 offen' % (vr(OM + 4, 4), vL16))
        p('s_and_b32 s37, s18, 3')
        p('s_lshl_b32 s38, s37, 6')
        p('s_lshl_b32 s37, s37, 10')
        p('s_add_u32 s37, s37, %d' % L_OM)
        p('v_add_u32 v%d, s37, v%d' % (vT0, vL16))
        p('s_cmp_ge_u32 s18, 4')
        p('s_cbranch_scc1 L_late')
        if PRIO and OLDS == 2: p('s_setprio 2')
        p('s_waitcnt lgkmcnt(0)')
        p('s_add_u32 s20, s4, s36')
        p('s_addc_u32 s21, s5, 0')
        if OLDS == 3: fetch()
        loadKg(0, NG)
        if OLDS == 3: share(2 * NG)
        eload(True, False)
        if HELP: help_setup()
        p('s_barrier')
        p('s_branch L_join')
        p('L_late:')
        p('s_waitcnt lgkmcnt(0)')
        if OLDS == 2: fetch()
        p('s_add_u32 s20, s4, s36')
        p('s_addc_u32 s21, s5, 0')
        eload(True, False)
        if HELP:
            help_setup(); helper()
        if OLDS == 2:
            if PRIO: p('s_setprio 2')
            share(0)
        p('s_barrier')
        if HELP: p('L_kl2:')
        loadKg(0, NG)
        p('L_join:')
        loadKg(NG, 12)
        loadKg(max(NG, 12), 16, R3K)
        if PRIO: p('s_setprio 0')
        if HELP:
            p('s_and_b32 s37, s39, 256')
            p('v_add_u32 v%d, s37, v%d' % (vT0, vG))
        for kk in range(4): p('ds_read_b128 %s, v%d offset:%d' % (vr(OM + 4 * kk, 4), vL16, L_OM + 1024 * kk))
        for kk in range(4): p('ds_read_b128 %s, v%d offset:%d' % (vr(PH + 4 * kk, 4), vT0 if HELP else vG, L_Q + 64 * kk))
    elif OLDS:
        p('s_lshl_b32 s38, s18, 6')
        p('s_and_b32 s37, s39, 0xfffffe00')
        p('s_cmp_lt_u32 s18, 4')
        p('s_cselect_b32 s30, 0x1000, 0')
        p('s_cselect_b64 vcc, -1, 0')
        p('s_cmp_eq_u32 s18, 4')
        p('s_cselect_b32 s30, 0x200, s30')
        p('s_cselect_b32 s38, 0, s38')
        p('s_mov_b32 s31, 0x00020000')
        p('v_cndmask_b32 v%d, v%d, v%d, vcc' % (vT1, vL16, vT1))
        p('s_waitcnt lgkmcnt(0)')
        p('s_add_u32 s8, s8, s37')
        p('s_addc_u32 s9, s9, 0')
        p('s_cmp_lt_u32 s18, 4')
        p('s_cselect_b32 s28, s12, s8')
        p('s_cselect_b32 s29, s13, s9')
        p('s_add_u32 s20, s4, s36')
        p('s_addc_u32 s21, s5, 0')
        p('buffer_load_dwordx4 %s, v%d, s[28:31], s38 offen' % (vr(OM, 4), vT1))
        eload(True, not EL)
        if HELP: help_setup()
        p('s_min_u32 s37, s18, 5')
        p('s_lshl_b32 s37, s37, 10')
        p('s_add_u32 s37, s37, %d' % L_OM)
        p('v_add_u32 v%d, s37, v%d' % (vT0, vL16))
        p('s_cmp_lt_u32 s18, %d' % NE)
        p('s_cbranch_scc1 L_kload')
        p('s_waitcnt vmcnt(0)')
        p('ds_write_b128 v%d, %s' % (vT0, vr(OM, 4)))
        if HELP:
            helper()
        p('s_waitcnt lgkmcnt(0)')
        p('s_barrier')
        p('L_kload:')
        for u in range(4): loadKblk(u, KB + 32 * u, R3K if u == 3 else 20)
        if PRIO: p('s_setprio 0')
        p('s_cmp_ge_u32 s18, %d' % NE)
        p('s_cbranch_scc1 L_shared')
        p('s_waitcnt vmcnt(32)')
        p('ds_write_b128 v%d, %s' % (vT0, vr(OM, 4)))
        p('s_waitcnt lgkmcnt(0)')
        p('s_barrier')
        p('L_shared:')
        p('s_lshl_b32 s37, s19, 8')
        p('s_and_b32 s37, s37, 256')
        p('v_add_u32 v%d, s37, v%d' % (vT0, vG))
        for kk in range(4): p('ds_read_b128 %s, v%d offset:%d' % (vr(OM + 4 * kk, 4), vL16, L_OM + 1024 * kk))
        for kk in range(4): p('ds_read_b128 %s, v%d offset:%d' % (vr(PH + 4 * kk, 4), vT0, L_Q + 64 * kk))
    else:
        LS = opt.get('ls', 0)
        if 'ol' in opt:
            def loadKn(a, b):
                for n in range(a, b):
                    G, h = n >> 1, n & 1
                    p('buffer_load_dwordx4 %s, v%d, s[20:23], %s offen offset:%d%s' % (vr(KB + 8 * G + 4 * h, 4), vK, sofs[goff(G) & ~4095], 128 * h + (goff(G) & 4095), NT))
            HPR = opt.get('hpr', 0)
            Q1 = opt.get('q1', 0)
            if Q1:
                p('v_and_b32 v%d, 3, v0' % vT0)
                p('v_lshl_add_u32 v%d, v%d, 6, v%d' % (vG, vT0, vG))
            def omq(k, k2, hi=0):
                st = opt.get('ohs' if hi else 'os', 0)
                o0 = 0 if hi else opt.get('o0', 0)
                ld = [(0 if i < o0 else min(32, k + st * i), 'buffer_load_dwordx4 %s, v%d, s[28:31], 0 offen offset:%d' % (vr(OM + 4 * i, 4), vT1, 64 * i)) for i in range(4)]
                if Q1: ld += [(k2, 'buffer_load_dwordx4 %s, v%d, s[32:35], 0 offen' % (vr(TB, 4), vG))]
                else: ld += [(min(32, max(k2, k + st * (4 + i))), 'buffer_load_dwordx4 %s, v%d, s[32:35], 0 offen offset:%d' % (vr(PH + 4 * i, 4), vG, 64 * i)) for i in range(4)]
                ld.sort(key=lambda x: x[0])
                n, done = 0, False
                for i, (at, txt) in enumerate(ld):
                    if at > k and not done and not opt.get('ee', 0):
                        eload(); done = True
                    loadKn(n, at); n = at
                    p(txt)
                if not done: eload()
                loadKn(n, 32)
                return n
            OLo, OHi = opt['ol'], opt.get('oh', opt['ol'])
            QLo, QHi = opt.get('ql', OLo), opt.get('qh', OHi)
            p('s_mov_b32 s30, 0x1000'); p('s_mov_b32 s31, 0x00020000'); p('s_mov_b32 s34, 0x100'); p('s_mov_b32 s35, 0x00020000')
            p('s_waitcnt lgkmcnt(0)')
            p('s_add_u32 s20, s4, s36')
            p('s_addc_u32 s21, s5, 0')
            p('s_mov_b32 s28, s12'); p('s_mov_b32 s29, s13')
            p('s_add_u32 s32, s8, s39'); p('s_addc_u32 s33, s9, 0')
            p('s_cmp_ge_u32 s18, 4')
            p('s_cbranch_scc1 L_hi')
            QLo = omq(OLo, QLo)
            p('s_branch L_j')
            p('L_hi:')
            if opt.get('e7', 0) >= 5:
                if opt['e7'] == 5:
                    p('s_cmp_lg_u32 s18, %d' % PUB)
                    p('s_cbranch_scc1 L_noe')
                eload('now', True)
                if opt['e7'] == 5: p('L_noe:')
            QHi = omq(OHi, QHi, 1)
            p('L_j:')
            if opt.get('e7', 0) >= 5: eload('now', False)
            if PRIO: p('s_setprio 0')
        elif LS:
            assert ORD and PUB >= 4 and LS >= OML and not (HELP or LH or VT or BS)
            p('s_cmp_ge_u32 s18, 4')
            p('s_waitcnt lgkmcnt(0)')
            p('s_add_u32 s20, s4, s36')
            p('s_addc_u32 s21, s5, 0')
            p('s_cmp_ge_u32 s18, 4')
            p('s_cbranch_scc1 L_hi')
            for u in range(OML): loadKblk(u, KB + 32 * u)
            srd(p, 28, 12, None, 4096)
            for kk in range(4): p('buffer_load_dwordx4 %s, v%d, s[28:31], 0 offen offset:%d' % (vr(OM + 4 * kk, 4), vT1, 64 * kk))
            srd(p, 32, 8, 39, 256)
            for kk in range(4): p('buffer_load_dwordx4 %s, v%d, s[32:35], 0 offen offset:%d' % (vr(PH + 4 * kk, 4), vG, 64 * kk))
            eload(True, False)
            p('s_mov_b32 s%d, 0' % sE)
            for u in range(OML, LS): loadKblk(u, KB + 32 * u)
            p('s_cmp_lg_u32 s18, %d' % opt.get('lw', 0))
            p('s_cbranch_scc1 L_nosh')
            p('s_waitcnt vmcnt(%d)' % (8 * (LS - OML)))
            for kk in range(4): p('ds_write_b128 v%d, %s offset:%d' % (vL16, vr(OM + 4 * kk, 4), L_OM + 1024 * kk))
            for kk in range(4): p('ds_write_b128 v%d, %s offset:%d' % (vL16, vr(PH + 4 * kk, 4), L_Q + 1024 * kk))
            p('s_waitcnt lgkmcnt(0)')
            p('L_nosh:')
            p('s_barrier')
            for u in range(LS, 4): loadKblk(u, KB + 32 * u)
            if PRIO: p('s_setprio 0')
            p('s_branch L_j')
            p('L_hi:')
            eload()
            p('s_barrier')
            for u in range(4): loadKblk(u, KB + 32 * u)
            if PRIO: p('s_setprio 0')
            for kk in range(4): p('ds_read_b128 %s, v%d offset:%d' % (vr(OM + 4 * kk, 4), vL16, L_OM + 1024 * kk))
            for kk in range(4): p('ds_read_b128 %s, v%d offset:%d' % (vr(PH + 4 * kk, 4), vL16, L_Q + 1024 * kk))
            p('L_j:')
        else:
            p('s_waitcnt lgkmcnt(0)')
            if opt.get('hs', 0): p('s_memrealtime %s' % sr(sST + 6, 2))
            p('s_add_u32 s20, s4, s36')
            p('s_addc_u32 s21, s5, 0')
            for u in range(OML): loadKblk(u, KB + 32 * u)
            if opt.get('hs', 0) == 2:
                p('s_waitcnt vmcnt(7)')
                p('s_memrealtime %s' % sr(sST + 6, 2))
            if opt.get('hs', 0) == 3:
                p('s_waitcnt vmcnt(0)')
                p('s_memrealtime %s' % sr(sST + 6, 2))
            srd(p, 28, 12, None, 4096)
            for kk in range(4): p('buffer_load_dwordx4 %s, v%d, s[28:31], 0 offen offset:%d' % (vr(OM + 4 * kk, 4), vT1, 64 * kk))
            if HELP:
                eload(); help_setup(); helper()
            srd(p, 32, 8, 39, 256)
            for kk in range(4): p('buffer_load_dwordx4 %s, v%d, s[32:35], 0 offen offset:%d' % (vr(PH + 4 * kk, 4), vG, 64 * kk))
            if not HELP: eload()
            if LH:
                p('s_load_dword s%d, s[10:11], 128 glc' % sE2)
                help_setup()
                if DM:
                    p('s_cselect_b32 s49, 0, -1')
                    p('v_and_b32 v%d, s49, v%d' % (X + 13, vK))
                    p('v_and_b32 v%d, s49, v%d' % (X + 14, vL16))
            if VT & 96:
                p('s_cmp_lg_u32 s18, %d' % PUB)
                p('s_cbranch_scc1 L_notouch')
                if VT & 32:
                    p('s_lshl_b32 s37, s19, 14')
                    p('v_mov_b32 v%d, s37' % (X + 13))
                    p('global_load_dword v%d, v%d, s[16:17] offset:%d' % (X + 13, X + 13, 1024 * CC))
                if VT & 64:
                    p('v_mov_b32 v%d, s39' % (X + 14))
                    p('global_load_dword v%d, v%d, s[14:15]' % (X + 14, X + 14))
                p('L_notouch:')
            for u in range(OML, 4):
                loadKblk(u, KB + 32 * u, R3K if u == 3 else 20)
                if BS == 2: p('s_memrealtime %s' % sr(sST + 2 + 2 * u, 2))
            if PRIO: p('s_setprio 0')
    if not P10: p('v_add_u32 v%d, v%d, v%d' % (vV, vL16, vW))
    srd(p, 24, 6, 36, KSZ)
    if VT & 2: p('s_load_dword s59, s[24:25], 0')
    setup_consts()
    if LH:
        p('s_mov_b32 s%d, s24' % R3V); p('s_mov_b32 s%d, s25' % (R3V + 1)); p('s_mov_b32 s%d, s%d' % (R3V + 2, R3K + 2)); p('s_mov_b32 s%d, s27' % (R3V + 3))
        if XP:
            p('s_lshl_b32 s37, s2, 3')
            p('s_xor_b32 s38, s18, 7')
            p('s_add_u32 s37, s37, s38')
            p('s_lshl_b32 s37, s37, 10')
            p('s_add_u32 s37, s37, 0x%x' % WS_X)
            srd(p, RX, 16, 37, 1024)
        p('s_cmp_ge_u32 s40, %d' % (8 + HW))
        p('s_cselect_b32 s49, 0, -1')
        if XP:
            p('s_cselect_b32 s%d, 1024, 0' % (RX + 2))
            p('s_xor_b32 s37, s40, 15')
            p('s_min_u32 s40, s40, s37')
    if HELP:
        p('s_mov_b32 s%d, s24' % R3V); p('s_mov_b32 s%d, s25' % (R3V + 1)); p('s_mov_b32 s%d, s%d' % (R3V + 2, R3K + 2)); p('s_mov_b32 s%d, s27' % (R3V + 3))
        xaddr(0)
        p('s_cmp_ge_u32 s40, %d' % (8 + HW))
        p('s_cselect_b32 s%d, 1024, 0' % (RX + 2))
        p('s_cselect_b32 s49, 0, -1')
    vS0, vS1, vE0 = X + 13, X + 14, X + 15
    if WF == 3:
        assert not (HELP or LH or VT or OLDS or TH or int(VI))
        SEL, vDA, vDS, vIX = X + 8, X + 14, X + 15, vK
        vS0, vS1 = SEL + 2, SEL + 3
        p('s_lshl_b32 s37, s18, 9')
        if ORD: p('v_lshl_add_u32 v%d, v0, 3, s37' % vWA)
        else:
            p('v_and_b32 v%d, 15, v0' % vWA)
            p('v_bfe_u32 v%d, v0, 4, 1' % vDS)
            p('v_lshl_add_u32 v%d, v%d, 1, v%d' % (vWA, vWA, vDS))
            p('v_lshl_add_u32 v%d, v%d, 4, s37' % (vWA, vWA))
        p('v_bfe_u32 v%d, v0, 3, 1' % vS0)
        p('v_lshlrev_b32 v%d, 4, v%d' % (vS0, vS0))
        p('s_movk_i32 s37, 0x3f80')
        p('v_lshlrev_b32 v%d, v%d, s37' % (vS0, vS0))
        p('v_bfe_u32 v%d, v0, 2, 1' % vS1)
        p('v_and_b32 v%d, 1, v0' % vDS)
        p('v_lshl_add_u32 v%d, v%d, 1, v%d' % (vS1, vS1, vDS))
        p('v_lshrrev_b32 v%d, 4, v0' % vDS)
        p('v_cmp_eq_u32 vcc, v%d, v%d' % (vS1, vDS))
        p('v_cndmask_b32 v%d, 0, v%d, vcc' % (vS0, vS0))
        p('v_and_b32 v%d, 2, v0' % vDS)
        p('v_cmp_eq_u32 vcc, 0, v%d' % vDS)
        p('v_cndmask_b32 v%d, v%d, 0, vcc' % (vS1, vS0))
        p('v_cndmask_b32 v%d, 0, v%d, vcc' % (vS0, vS0))
        for i in (0, 1, 4, 5): p('v_mov_b32 v%d, 0' % (SEL + i))
        if ORD:
            p('v_lshrrev_b32 v%d, 2, v0' % vIX)
            p('v_and_b32 v%d, 2, v%d' % (vIX, vIX))
            p('v_bitop3_b32 v%d, v%d, v0, 3 bitop3:0x28' % (vIX, vIX))
        else: p('v_and_b32 v%d, 3, v0' % vIX)
        p('v_mul_u32_u24 v%d, 0x5555, v%d' % (vIX, vIX))
    elif WF:
        assert not (HELP or LH or VT & 124)
        p('v_lshlrev_b32 v%d, 5, v0' % vWA)
        p('s_lshl_b32 s37, s18, 9')
        p('v_add_u32 v%d, s37, v%d' % (vWA, vWA))
        p('v_and_b32 v%d, 1, v0' % vS0)
        p('v_lshlrev_b32 v%d, 4, v%d' % (vS0, vS0))
        p('s_movk_i32 s37, 0x3f80')
        p('v_lshlrev_b32 v%d, v%d, s37' % (vS0, vS0))
        p('v_bfe_u32 v%d, v0, 2, 2' % vS1)
        p('v_lshrrev_b32 v%d, 4, v0' % vE0)
        p('v_cmp_eq_u32 vcc, v%d, v%d' % (vS1, vE0))
        p('v_cndmask_b32 v%d, 0, v%d, vcc' % (vS0, vS0))
        p('v_and_b32 v%d, 2, v0' % vE0)
        p('v_cmp_eq_u32 vcc, 0, v%d' % vE0)
        p('v_cndmask_b32 v%d, v%d, 0, vcc' % (vS1, vS0))
        p('v_cndmask_b32 v%d, 0, v%d, vcc' % (vS0, vS0))
        p('v_and_b32 v%d, 15, v0' % vE0)
        p('v_cmp_eq_u32 vcc, 0, v%d' % vE0)
        p('v_cndmask_b32 v%d, 0, 1.0, vcc' % vE0)
    else:
        p('v_and_b32 v%d, 15, v0' % vWA)
        p('v_lshlrev_b32 v%d, 6, v%d' % (vWA, vWA))
        p('v_add_u32 v%d, v%d, v%d' % (vWA, vWA, vG))
        p('v_lshrrev_b32 v%d, 1, v%d' % (vWA, vWA))
        p('s_lshl_b32 s37, s18, 9')
        p('v_add_u32 v%d, s37, v%d' % (vWA, vWA))
    p('s_lshl_b32 s56, s19, 14')
    srd(p, 28, 16, 56, 16384)
    p('s_lshl_b32 s57, s3, 10')
    srd(p, 32, 14, 39, 256)
    p('v_lshlrev_b32 v%d, 3, v0' % vRA)
    p('s_lshl_b32 s37, s18, 2')
    p('s_add_u32 s37, s37, 4096')
    p('v_mov_b32 v%d, s37' % vDA)
    vbase = [KB + 32 * u for u in range(4)]
    NTOUCH = 0
    if VT & 28: p('v_mov_b32 v%d, 0' % vT0)
    if VT & 4:
        p('buffer_load_dword v%d, v%d, s[28:31], 0 offen offset:%d' % (X + 13, vT0, 1024 * CC)); NTOUCH += 1
    if VT & 8:
        p('buffer_load_dword v%d, v%d, s[32:35], 0 offen' % (X + 14, vT0)); NTOUCH += 1
    if VT & 16:
        p('buffer_load_dword v%d, v%d, s[24:27], 0 offen' % (X + 15, vW)); NTOUCH += 1
    if 'ol' in opt:
        p('s_cmp_ge_u32 s18, 4')
        p('s_cbranch_scc1 L_hi2')
        p('s_waitcnt vmcnt(%d)' % (32 - QLo))
        p('s_branch L_j2')
        p('L_hi2:')
        p('s_waitcnt vmcnt(%d)' % (32 - QHi))
        p('L_j2:')
        if Q1:
            for kk in range(4):
                for r in range(4): p('v_mov_b32_dpp v%d, v%d row_newbcast:%d row_mask:0xf bank_mask:0xf' % (PH + 4 * kk + r, TB + r, kk))
    elif opt.get('ls', 0):
        p('s_cmp_ge_u32 s18, 4')
        p('s_cbranch_scc1 L_hi2')
        p('s_waitcnt vmcnt(%d)' % (32 - 8 * OML))
        p('L_hi2:')
        p('s_waitcnt lgkmcnt(0)')
    else: p('s_waitcnt lgkmcnt(0)' if OLDS else 's_waitcnt vmcnt(%d)' % (32 - 8 * OML + NTOUCH))
    if OLDS >= 2 or (OLDS and EL): eload(False, True)
    if not TS: stamp(1)
    phi_q(p, PH, OM, T, SQ, PQ, S0, vONE, vEPS)
    def vissue():
        if HELP: p('buffer_load_dwordx4 %s, v%d, %s, 0 offen sc1' % (vr(GX, 4), vL16, sr(RX, 4)))
        if TH:
            p('s_and_b32 s37, s2, 1')
            p('s_lshl_b32 s37, s37, 3')
            p('s_add_u32 s37, s37, s18')
            p('s_sub_u32 s37, s37, %d' % THW)
            p('s_cmp_ge_u32 s37, %d' % (8 - THW))
            p('s_cbranch_scc1 L_vfree')
            n = 0
            for G in range(16):
                for h in range(2):
                    if n >= TH: p('s_waitcnt vmcnt(%d)' % (TH - 1))
                    p('buffer_load_dwordx4 %s, v%d, %s, %s offen offset:%d%s' % (vr(KB + 8 * G + 4 * h, 4), vV, sr(24, 4), sofs[goff(G) & ~4095], 1024 * h + (goff(G) & 4095), NT))
                    n += 1
            p('s_branch L_vdone')
            p('L_vfree:')
        if VO:
            for G in VORD: loadVg(G, G + 1)
            return
        for uu in range(4):
            if XP == uu + 1: p('buffer_load_dwordx4 %s, v%d, %s, 0 offen sc1' % (vr(GX, 4), vL16, sr(RX, 4)))
            loadVblk(uu, vbase[uu], R3V if uu == 3 else 24)
            if BS == 2: p('s_memrealtime %s' % sr(sST + 10 + 2 * uu, 2))
        if TH: p('L_vdone:')
    def weights(P3):
        p.comment('w[k] = sum_m phi_q[m] phi[m][k], as a high and a low bf16 row')
        SL, T0, U0, BM, BE = TB, TB + 8, TB + 16, TB + 24, TB + 25
        for i, r in enumerate((None, None, vS0, vS1, None, None)): p('v_mov_b32 v%d, %s' % (SL + i, 'v%d' % r if r else '0'))
        p('v_and_b32 v%d, 15, v0' % BE)
        p('v_cmp_eq_u32 vcc, 1, v%d' % BE)
        p('v_mfma_f32_16x16x32_bf16 %s, %s, %s, 0' % (vr(T0, 4), vr(P3, 4), vr(SL + 2, 4)))
        p('v_mfma_f32_16x16x32_bf16 %s, %s, %s, 0' % (vr(T0 + 4, 4), vr(P3, 4), vr(SL, 4)))
        p('v_cndmask_b32 v%d, 0, 1.0, vcc' % BE)
        p('v_add_f32 v%d, v%d, v%d' % (BM, BE, vE0))
        for r in range(4):
            for sx in range(2):
                p('%s v%d, v%d, v%d' % ('v_fmac_f32' if r else 'v_mul_f32', SL + sx, PQ + r, T0 + 4 * sx + r))
        for sx in range(2): p('v_mfma_f32_16x16x4_f32 %s, v%d, v%d, 0' % (vr(U0 + 4 * sx, 4), SL + sx, BM))
        for q in range(4): p('v_cvt_pk_bf16_f32 v%d, v%d, v%d' % (P3 + q, U0 + 2 * q, U0 + 2 * q + 1))
        for q in range(4):
            p('v_lshlrev_b32 v%d, 16, v%d' % (T0 + 2 * q, P3 + q))
            p('v_and_b32 v%d, s%d, v%d' % (T0 + 2 * q + 1, sMASK, P3 + q))
        for i in range(8): p('v_fma_f32 v%d, -v%d, v%d, v%d' % (U0 + i, BE, T0 + i, U0 + i))
        for q in range(4): p('v_cvt_pk_bf16_f32 v%d, v%d, v%d' % (P3 + q, U0 + 2 * q, U0 + 2 * q + 1))
    WREG = [[PH + i for i in range(8)], [PH + 8 + i for i in range(4)] + [ZACC + i for i in range(4)],
            [ONES + i for i in range(4)] + [GX + i for i in range(4)], [TB + 24 + i for i in range(8)]]
    AREG = [ACC, ACC + 16, OM, TB]
    A4 = PH + 12
    def expand(u, lo=0, hi=8):
        for i in range(lo, hi):
            w = WREG[u][i]
            p('v_pk_mul_f32 %s, %s, %s op_sel:[%d,0] op_sel_hi:[%d,1]' % (vr(AREG[u] + 2 * i, 2), vr(w & ~1, 2), vr(SEL, 2), w & 1, w & 1))
    def weights3(u):
        p.comment('w[k] = sum_m phi_q[m] phi[m][k], as a (low, high) bf16 pair per key')
        P3, SL, T0, U0 = PH + 12, TB, TB + 8, TB + 16
        p('v_mfma_f32_16x16x32_bf16 %s, %s, %s, 0' % (vr(T0, 4), vr(P3, 4), vr(SEL + 2, 4)))
        p('v_mfma_f32_16x16x32_bf16 %s, %s, %s, 0' % (vr(T0 + 4, 4), vr(P3, 4), vr(SEL, 4)))
        if u == 3:
            p('v_and_b32 v%d, 4, v0' % SL)
            p('v_cmp_eq_u32 vcc, 0, v%d' % SL)
            p('v_cndmask_b32 v%d, 0, 1.0, vcc' % SEL)
            p('v_cndmask_b32 v%d, 1.0, 0, vcc' % (SEL + 1))
            expand(0, 0, 4)
        for r in range(4):
            for sx in range(2):
                p('%s v%d, v%d, v%d' % ('v_fmac_f32' if r else 'v_mul_f32', SL + sx, PQ + r, T0 + 4 * sx + r))
        if u: p('v_add_f32 v%d, v%d, v%d' % (vDS, vDS, SL))
        p('v_add_f32 v%d, v%d, v%d' % (vDS, vDS if u else SL, SL + 1))
        for sx in range(2): p('v_mfma_f32_16x16x4_f32 %s, v%d, v%d, 0' % (vr(U0 + 4 * sx, 4), SL + sx, vONE))
        if u == 3:
            expand(0, 4, 8); expand(1)
            p('v_mfma_f32_16x16x4_f32 %s, v%d, v%d, 0' % (vr(ZACC, 4), vDS, vONE))
        for i in range(8): p('v_cvt_pk_bf16_f32 v%d, 0, v%d' % (T0 + i, U0 + i))
        for i in range(0, 8, 2): p('v_pk_add_f32 %s, %s, %s neg_lo:[0,1] neg_hi:[0,1]' % (vr(T0 + i, 2), vr(U0 + i, 2), vr(T0 + i, 2)))
        for i in range(8): p('v_cvt_pk_bf16_f32 v%d, v%d, v%d' % (WREG[u][i], T0 + i, U0 + i))
    sched = [2 * int(c) for c in VI] if int(VI) else None
    if sched:
        assert sum(sched) == 16 and not (HELP or LH or TH or BS)
        cum = [sum(sched[:i + 1]) for i in range(4)]
        def vissue(): loadVg(0, cum[0])
    if ORD:
        vissue0 = vissue
        def vissue():
            p('s_cmp_eq_u32 s18, %d' % PUB)
            p('s_cbranch_scc1 L_vlater')
            vissue0()
            if not FA:
                p('s_cmp_lt_u32 s18, 4')
                p('s_cbranch_scc1 L_vlater')
            p('s_barrier')
            p('L_vlater:')
    for u in range(4):
        p.comment('K block %d' % u)
        if opt.get('e7', 0) == u + 1:
            eload('now', False)
            p('s_mov_b32 s%d, 0' % sE)
            p('s_cmp_lg_u32 s18, %d' % PUB)
            p('s_cbranch_scc1 L_noe')
            p('s_load_dword s%d, s[10:11], 0 glc' % sE)
            p('L_noe:')
        p('s_waitcnt vmcnt(%d)' % (24 - 8 * u + NTOUCH))
        if BS == 1: p('s_memrealtime %s' % sr(sST + 2 + 2 * u, 2))
        k_block(KB + 32 * u, PH + 12 if WF == 3 else PH + 4 * u, vissue if u == 3 else None)
        if WF == 2: weights(PH + 4 * u)
        if WF == 3: weights3(u)
    if HELP or LH:
        for G in range(4): p('v_and_b32 v%d, s49, v%d' % (PH + 12 + G, PH + 12 + G))
    if not TS: stamp(2)
    Dn, D2 = vT0, vT1
    if WF == 2:
        for u in range(4):
            p('v_mfma_f32_16x16x32_bf16 %s, %s, %s, %s' % (vr(ZACC, 4), vr(PH + 4 * u, 4), vr(ONES, 4), '0' if u == 0 else vr(ZACC, 4)))
        p('v_add_f32 v%d, v%d, v%d' % (Dn, ZACC, ZACC + 1))
    elif WF == 3:
        p('v_pk_add_f32 %s, %s, %s' % (vr(ZACC, 2), vr(ZACC, 2), vr(ZACC + 2, 2)))
        for i in range(4): p('v_mov_b32 v%d, 0' % (A4 + i))
        p('v_add_f32 v%d, v%d, v%d' % (vDS, ZACC, ZACC + 1))
        expand(2, 0, 2)
        p('v_mfma_f32_16x16x4_f32 %s, v%d, v%d, 0' % (vr(ZACC, 4), vDS, vONE))
        expand(2, 2, 8); expand(3)
        Dn = ZACC
    else: den_fold(4, Dn, D2)
    p('s_waitcnt lgkmcnt(0)')
    p('s_add_u32 s%d, s%d, 0x%08x' % (sE, sE, TAGK))
    def den_write():
        p('s_mov_b64 exec, 1')
        p('ds_write_b32 v%d, v%d' % (vDA, Dn))
        p('s_mov_b64 exec, -1')
    def vphase(xtra=0):
        for u in range(4):
            p.comment('V block %d' % u)
            for q in range(4):
                p('s_waitcnt vmcnt(%d)' % (30 - 8 * u - 2 * q + xtra))
                G = VORD[4 * u + q]
                p('v_smfmac_f32_16x16x64_bf16 %s, %s, %s, v%d' % (vr(A4, 4), vr(AREG[G >> 2] + 4 * (G & 3), 4), vr(KB + 8 * G, 8), vIX))
            if BS == 1: p('s_memrealtime %s' % sr(sST + 10 + 2 * u, 2))
    if ORD:
        assert not BS
        p('s_cmp_eq_u32 s18, %d' % PUB)
        den_write()
        p('s_cbranch_scc1 L_last')
        vphase()
        p('ds_write_b64 v%d, %s' % (vWA, vr(A4, 2)))
        HP = opt.get('hp', 0)
        if opt.get('dd', 0):
            p('s_cmp_ge_u32 s18, 4')
            p('s_cbranch_scc1 L_nodd')
            p('s_lshl_b32 s36, s2, 2'); p('s_add_u32 s36, s36, s18'); p('s_lshl_b32 s36, s36, 12'); p('s_add_u32 s36, s36, 0x1000000')
            srd(p, 20, 16, 36, 4096)
            for i in range(opt['dd']): p('buffer_store_dwordx4 %s, v%d, s[20:23], 0 offen offset:%d%s' % (vr(KB, 4), vL16, 1024 * i, ['', ' sc1', ' nt'][opt.get('dm2', 0)]))
            p('L_nodd:')
        if HP:
            assert P10 and PUB == 7
            hw0 = 6 if HP in (1, 3, 5) else 4
            p('s_cmp_lt_u32 s18, %d' % hw0)
            p('s_cbranch_scc1 L_nohp')
            if HP in (1, 3, 5): p('s_add_u32 s58, s3, %d' % opt.get('hd', 1))
            else:
                p('s_add_u32 s58, s3, s18')
                p('s_sub_u32 s58, s58, 3')
            p('s_and_b32 s58, s58, 7')
            HX = opt.get('hx', 0)
            if HX:
                p('s_bitcmp1_b32 s19, 0')
                if HX == 1: p('s_cbranch_scc1 L_nohp')
                p('s_cselect_b32 s58, s58, s3')
                p('s_or_b32 s36, s19, 1')
                p('s_lshl_b32 s36, s36, 21')
            else: p('s_lshl_b32 s36, s19, 21')
            if opt.get('hc', 0):
                p('s_cmp_eq_u32 s3, %d' % CC)
                p('s_cbranch_scc1 L_nohp')
            place(58, 8)
            p('s_or_b32 s36, s36, 0x%x' % sum(1 << pos[5 + i] for i in range(3)))
            if HP in (2, 4):
                p('s_sub_u32 s58, 7, s18')
                for b in range(2):
                    p('s_bfe_u32 s37, s58, 0x%x' % (0x10000 | b)); p('s_lshl_b32 s37, s37, %d' % pos[3 + b]); p('s_or_b32 s36, s36, s37')
            srd(p, 20, 6, 36, KSZ if HP in (1, 3, 5) else goff(3) + 2048)
            p('s_waitcnt lgkmcnt(0)')
            p('s_barrier')
            PNT = ['', ' nt', ' sc1', ' sc0'][opt.get('pnt', 0)]
            for u in ([3, 2, 1] if HP == 1 else [3, 2] if HP == 3 else [3, 2, 1, 0] if HP == 5 else [0]):
                for G in reversed(range(4 * u, 4 * u + 4)):
                    for h in (1, 0):
                        p('buffer_load_dwordx4 %s, v%d, s[20:23], %s offen offset:%d%s' % (vr(KB + 8 * G + 4 * h, 4), vV, sofs[goff(G) & ~4095], 1024 * h + (goff(G) & 4095), PNT))
            p('s_endpgm')
            p('L_nohp:')
        p('s_waitcnt lgkmcnt(0)')
        p('s_endpgm')
        p('L_last:')
        GA = A4 - 2
        R, ZR = TB + 16, PH
        oth = [w for w in range(8) if w != PUB]
        p('v_mov_b32 v%d, 0' % D2)
        p('v_mov_b32 v%d, s%d' % (GA + 1, sE))
        p('s_add_u32 s38, s57, 8192')
        p('v_and_b32 v%d, 15, v0' % vWA)
        p('v_bfe_u32 v%d, v0, 4, 1' % R)
        p('v_lshl_add_u32 v%d, v%d, 1, v%d' % (vWA, vWA, R))
        p('v_lshrrev_b32 v%d, 5, v0' % R)
        p('v_lshl_add_u32 v%d, v%d, 1, v%d' % (vWA, vWA, R))
        p('v_lshlrev_b32 v%d, 2, v%d' % (vWA, vWA))
        if opt.get('dv', 0) == 2: p('v_mul_f32 v%d, s%d, v%d' % (vEPS, sQ25, vEPS))
        if opt.get('lp', 0): p('s_setprio %d' % opt['lp'])
        p('s_waitcnt lgkmcnt(0)')
        if opt.get('sf', 0):
            assert P10
            for G in reversed(range(16 - opt['sf'], 16)):
                for o in range(0, 2048, opt.get('sg', 128)): p('s_load_dword s58, s[24:25], 0x%x' % (goff(G) + o))
        p('s_barrier')
        nt0 = NT
        if not opt.get('ntl', 1): NT = ''
        vissue0()
        NT = nt0
        TTm = opt.get('tt', 0)
        xtra = 0
        for bit, rs, so in ((1, 28, 's38'), (2, 28, 's57'), (4, 32, '0')):
            if TTm & bit:
                p('buffer_load_dword v%d, v%d, %s, %s offen' % (ZACC + xtra, D2, sr(rs, 4), so)); xtra += 1
        if PW:
            p('s_not_b32 s37, s%d' % sE)
            p('v_mov_b32 v%d, s37' % (ZACC + 1))
            p('buffer_store_dwordx4 %s, v%d, s[28:31], s38 offen' % (vr(ZACC, 4), vL16)); xtra += 1
        p('s_barrier')
        for i, w in enumerate(oth): p('ds_read_b64 %s, v%d offset:%d' % (vr(R + 2 * i, 2), vRA, 512 * w))
        for h in range(2): p('ds_read_b128 %s, v%d offset:%d' % (vr(ZR + 4 * h, 4), D2, 4096 + 16 * h))
        p('s_waitcnt lgkmcnt(2)')
        p('v_pk_add_f32 %s, %s, %s' % (vr(R, 2), vr(R, 2), vr(R + 2, 2)))
        p('v_pk_add_f32 %s, %s, %s' % (vr(R + 4, 2), vr(R + 4, 2), vr(R + 6, 2)))
        p('v_pk_add_f32 %s, %s, %s' % (vr(R + 8, 2), vr(R + 8, 2), vr(R + 10, 2)))
        p('v_pk_add_f32 %s, %s, %s' % (vr(R, 2), vr(R, 2), vr(R + 4, 2)))
        p('v_pk_add_f32 %s, %s, %s' % (vr(R + 8, 2), vr(R + 8, 2), vr(R + 12, 2)))
        p('s_waitcnt lgkmcnt(0)')
        p('v_pk_add_f32 %s, %s, %s' % (vr(A4, 2), vr(R, 2), vr(R + 8, 2)))
        p('v_pk_add_f32 %s, %s, %s' % (vr(ZR, 2), vr(ZR, 2), vr(ZR + 2, 2)))
        p('v_pk_add_f32 %s, %s, %s' % (vr(ZR + 4, 2), vr(ZR + 4, 2), vr(ZR + 6, 2)))
        p('v_pk_add_f32 %s, %s, %s' % (vr(ZR, 2), vr(ZR, 2), vr(ZR + 4, 2)))
        p('v_add_f32 v%d, v%d, v%d' % (GA, ZR, ZR + 1))
        vphase(xtra)
        p('s_cmp_eq_u32 s3, %d' % CC)
        stamp(1 if TS else 4)
        p('s_cbranch_scc1 L_cons')
        p('s_nop 5')
    elif not HELP: den_write()
    if WF == 1: weights(PH + 12)
    if sched: loadVg(cum[0], cum[1])
    if WF == 3 and not ORD: vphase()
    for u in range(0 if WF == 3 else 4):
        p.comment('V block %d' % u)
        if WF == 1 and u == 3:
            for t in range(8):
                p('v_mul_f32 v%d, v%d, v%d' % (KB + t, PQ, ACC + 4 * t))
                for r in range(1, 4): p('v_fmac_f32 v%d, v%d, v%d' % (KB + t, PQ + r, ACC + 4 * t + r))
                if t: p('v_mfma_f32_16x16x4_f32 %s, v%d, v%d, 0' % (vr(ACC + 4 * t - 4, 4), vE0, KB + t - 1))
            p('v_mfma_f32_16x16x4_f32 %s, v%d, v%d, 0' % (vr(ACC + 28, 4), vE0, KB + 7))
        left = 24 - 8 * u + (1 if XP > u + 1 else 0)
        if sched:
            left = 2 * (cum[min(u + 1, 3)] - 4 * (u + 1))
            assert left >= 0
        v_block(vbase[u], PH + 4 * u, u == 0, left, u == 3 and FW)
        if sched and u < 2: loadVg(cum[u + 1], cum[u + 2])
        if BS == 1: p('s_memrealtime %s' % sr(sST + 10 + 2 * u, 2))
        if u == 0 and HELP:
            p('s_cmp_lt_u32 s40, %d' % (8 + HW))
            p('s_cbranch_scc1 L_xok')
            p('s_mov_b32 s38, 0x40000')
            p('L_xpoll:')
            p('v_cmp_ne_u32 vcc, s%d, v%d' % (sE, GX + 3))
            p('s_cbranch_vccz L_xok')
            p('buffer_load_dwordx4 %s, v%d, %s, 0 offen sc1' % (vr(GX, 4), vL16, sr(RX, 4)))
            p('s_waitcnt vmcnt(0)')
            p('s_sub_u32 s38, s38, 1')
            p('s_cbranch_scc0 L_xpoll')
            p('L_xok:')
            p('v_add_f32 v%d, v%d, v%d' % (Dn, Dn, GX + 2))
            den_write()
    if not ORD:
        if not TS: stamp(3)
        N = KB
        if WF == 3:
            p('s_mov_b32 exec_hi, 0')
            p('ds_write_b128 v%d, %s' % (vWA, vr(A4, 4)))
            p('s_mov_b32 exec_hi, -1')
        elif WF:
            p('s_mov_b64 exec, 0xffff')
            for t in range(8):
                p('v_add_f32 v%d, v%d, v%d' % (N + t, ACC + 4 * t, ACC + 4 * t + 1))
                if t == 3: p('ds_write_b128 v%d, %s' % (vWA, vr(N, 4)))
            p('ds_write_b128 v%d, %s offset:16' % (vWA, vr(N + 4, 4)))
            p('s_mov_b64 exec, -1')
        else:
            num_fold(N)
            if HELP: p('v_pk_add_f32 %s, %s, %s' % (vr(N, 2), vr(N, 2), vr(GX, 2)))
            p('ds_write_b64 v%d, %s' % (vWA, vr(N, 2)))
        if BS:
            p('s_getreg_b32 s%d, hwreg(HW_REG_XCC_ID)' % (sST + 18))
            p('s_getreg_b32 s%d, hwreg(HW_REG_HW_ID)' % (sST + 19))
            p('s_lshl_b32 s36, s2, 3'); p('s_add_u32 s36, s36, s18'); p('s_lshl_b32 s36, s36, 7')
            p('s_add_u32 s36, s36, 0x8000000')
            srd(p, 20, 16, 36, 128)
            p('s_waitcnt lgkmcnt(0)')
            p('v_mov_b32 v%d, 0' % (KB + 47))
            for i in range(20): p('v_mov_b32 v%d, s%d' % (KB + 48 + i, sST + i))
            for i in range(5): p('buffer_store_dwordx4 %s, v%d, s[20:23], 0 offen offset:%d' % (vr(KB + 48 + 4 * i, 4), KB + 47, 16 * i))
        if LH:
            p('s_cmp_lt_u32 s%d, %d' % (40 if XP else 18, 0 if NOH == 2 else LH))
            p('s_cbranch_scc1 L_lh')
            p('L_lhdone:')
        if PW == 1:
            p('s_cmp_lg_u32 s18, %d' % PUB)
            p('s_cbranch_scc1 L_nopw')
            p('s_not_b32 s37, s%d' % sE)
            p('s_add_u32 s38, s57, 8192')
            p('v_mov_b32 v%d, s37' % (KB + 43))
            p('buffer_store_dwordx4 %s, v%d, s[28:31], s38 offen' % (vr(KB + 40, 4), vL16))
            p('L_nopw:')
        p('s_cmp_lg_u32 s18, %d' % PUB)
        p('s_waitcnt lgkmcnt(0)')
        p('s_barrier')
        p('s_cbranch_scc1 L_end')
        stamp(1 if TS else 4)
        R, ZR, GA = KB + 8, KB + 24, KB + 32
        p('v_mov_b32 v%d, 0' % D2)
        for w in range(8): p('ds_read_b64 %s, v%d offset:%d' % (vr(R + 2 * w, 2), vRA, 512 * w))
        for h in range(2): p('ds_read_b128 %s, v%d offset:%d' % (vr(ZR + 4 * h, 4), D2, 4096 + 16 * h))
        p('v_mov_b32 v%d, s%d' % (GA + 3, sE))
        p('s_add_u32 s38, s57, 8192')
        p('s_waitcnt lgkmcnt(6)')
        p('v_pk_add_f32 %s, %s, %s' % (vr(R, 2), vr(R, 2), vr(R + 2, 2)))
        p('v_pk_add_f32 %s, %s, %s' % (vr(R + 4, 2), vr(R + 4, 2), vr(R + 6, 2)))
        p('s_waitcnt lgkmcnt(2)')
        p('v_pk_add_f32 %s, %s, %s' % (vr(R + 8, 2), vr(R + 8, 2), vr(R + 10, 2)))
        p('v_pk_add_f32 %s, %s, %s' % (vr(R + 12, 2), vr(R + 12, 2), vr(R + 14, 2)))
        p('v_pk_add_f32 %s, %s, %s' % (vr(R, 2), vr(R, 2), vr(R + 4, 2)))
        p('v_pk_add_f32 %s, %s, %s' % (vr(R + 8, 2), vr(R + 8, 2), vr(R + 12, 2)))
        p('s_waitcnt lgkmcnt(0)')
        p('v_pk_add_f32 %s, %s, %s' % (vr(ZR, 2), vr(ZR, 2), vr(ZR + 2, 2)))
        p('v_pk_add_f32 %s, %s, %s' % (vr(ZR + 4, 2), vr(ZR + 4, 2), vr(ZR + 6, 2)))
        p('v_pk_add_f32 %s, %s, %s' % (vr(GA, 2), vr(R, 2), vr(R + 8, 2)))
        p('v_pk_add_f32 %s, %s, %s' % (vr(ZR, 2), vr(ZR, 2), vr(ZR + 4, 2)))
        p('s_cmp_eq_u32 s3, %d' % CC)
        p('v_add_f32 v%d, v%d, v%d' % (GA + 2, ZR, ZR + 1))
        p('s_cbranch_scc1 L_cons')
    if DUAL: p('buffer_store_dwordx4 %s, v%d, s[28:31], s38 offen' % (vr(GA, 4), vL16))
    if not opt.get('nos', 0): p('buffer_store_dwordx4 %s, v%d, s[28:31], s57 offen sc1' % (vr(GA, 4), vL16))
    if STAMP:
        stamp(2 if TS else 5)
        p('s_branch L_stamps')
    else:
        p('s_endpgm')
    p('L_cons:')
    stamp(2 if TS else 5)
    srcs = [s for s in range(8) if s != CC]
    TT = KB + 36
    M = TT
    G0 = KB + 48
    p('s_movk_i32 s40, 0x%x' % (0x2000 if DUAL else 0))
    p('s_movk_i32 s41, 0x%x' % (0x3000 if DUAL else 0x1000))
    p('s_mov_b32 s38, 0x40000')
    fN, fD, fT = (2, 0, 1) if ORD else (0, 2, 3)
    if not ORD: p('v_lshlrev_b32 v%d, 2, v0' % vK)
    DV = opt.get('dv', 0)
    if DV == 2 and not ORD: p('v_mul_f32 v%d, s%d, v%d' % (vEPS, sQ25, vEPS))
    GS = [G0 + 28 * i for i in range(PP)]
    SP = opt.get('sp', 0)
    SN, SD = TT + 2, TT + 1
    assert not SP or DV == 2
    def issue(G):
        for i, s in enumerate(srcs):
            p('buffer_load_dwordx4 %s, v%d, s[28:31], %s offen offset:%d sc1' % (vr(G + 4 * i, 4), vL16, 's41' if s >= 4 else 's40', 1024 * (s & 3)))
    def check(G, left, lab):
        for i in range(7):
            p('s_waitcnt vmcnt(%d)' % (left + 6 - i))
            if i == 0: p('v_xor_b32 v%d, s%d, v%d' % (M, sE, G + fT))
            else: p('v_bitop3_b32 v%d, v%d, s%d, v%d bitop3:0xbe' % (M, G + 4 * i + fT, sE, M))
            if SP:
                if i == 6: p('v_cmp_ne_u32 vcc, 0, v%d' % M)
                p('v_add_f32 v%d, v%d, v%d' % (SD, SD if i else GA + fD, G + 4 * i + fD))
                p('v_pk_add_f32 %s, %s, %s' % (vr(SN, 2), vr(SN if i else GA + fN, 2), vr(G + 4 * i + fN, 2)))
        if SP:
            p('v_cvt_pk_bf16_f32 v%d, 0, v%d' % (SD, SD))
            p('v_cvt_pk_bf16_f32 v%d, 0, v%d' % (SN, SN))
            p('v_fma_f32 v%d, v%d, s%d, v%d' % (SD, SD, sQ25, vEPS))
            p('v_cvt_pk_bf16_f32 v%d, 0, v%d' % (SN + 1, SN + 1))
            p('s_cbranch_vccz L_rdy0')
            return
        p('v_cmp_ne_u32 vcc, 0, v%d' % M)
        p('s_cbranch_vccz %s' % lab)
    for i in range(PP - 1): issue(GS[i])
    p('L_poll:')
    for i in range(PP):
        issue(GS[(i + PP - 1) % PP])
        if DUAL and i == 0:
            p('s_cmp_eq_u32 s38, 0x%x' % (0x40000 - N1))
            p('s_cselect_b32 s40, 0, s40')
            p('s_cselect_b32 s41, 0x1000, s41')
        check(GS[i], 7 * (PP - 1), 'L_rdy%d' % i)
    p('s_sub_u32 s38, s38, 1')
    p('s_cbranch_scc0 L_poll')
    if SP:
        p('L_rdy0:')
        stamp(4 if TS else 6)
        p('v_cvt_pk_bf16_f32 v%d, 0, v%d' % (SD, SD))
        p('v_mul_f32 v%d, s%d, v%d' % (SN, sQ25, SN))
        p('v_rcp_f32 v%d, v%d' % (SD, SD))
        p('v_mul_f32 v%d, s%d, v%d' % (SN + 1, sQ25, SN + 1))
        p('v_mul_f32 v%d, v%d, v%d' % (SN, SN, SD))
        p('v_mul_f32 v%d, v%d, v%d' % (SN + 1, SN + 1, SD))
        p('v_cvt_pk_bf16_f32 v%d, v%d, v%d' % (SN, SN, SN + 1))
        p('buffer_store_dword v%d, v%d, s[32:35], 0 offen' % (SN, vWA if ORD else vK))
    for i in reversed(range(0 if SP else PP)):
        p('L_rdy%d:' % i)
        stamp(4 if TS else 6)
        G = GS[i]
        GN, GD = GA + fN, GA + fD
        def n(a): return vr(G + 4 * a + fN, 2)
        def d(a): return G + 4 * a + fD
        p('v_add_f32 v%d, v%d, v%d' % (GD, GD, d(0)))
        for a, b in ((1, 2), (3, 4), (5, 6), (1, 3)): p('v_add_f32 v%d, v%d, v%d' % (d(a), d(a), d(b)))
        p('v_pk_add_f32 %s, %s, %s' % (vr(GN, 2), vr(GN, 2), n(0)))
        p('v_add_f32 v%d, v%d, v%d' % (GD, GD, d(5)))
        for a, b in ((1, 2), (3, 4), (5, 6)): p('v_pk_add_f32 %s, %s, %s' % (n(a), n(a), n(b)))
        p('v_add_f32 v%d, v%d, v%d' % (GD, GD, d(1)))
        p('v_pk_add_f32 %s, %s, %s' % (n(1), n(1), n(3)))
        p('v_pk_add_f32 %s, %s, %s' % (vr(GN, 2), vr(GN, 2), n(5)))
        if PP > 1:
            p('v_pk_add_f32 %s, %s, %s' % (vr(GN, 2), vr(GN, 2), n(1)))
            if i: p('s_branch L_fin')
    if not SP:
        if PP > 1: p('L_fin:')
        Dn = GD
        p('v_cvt_pk_bf16_f32 v%d, 0, v%d' % (Dn, Dn))
        if PP == 1: p('v_pk_add_f32 %s, %s, %s' % (vr(GN, 2), vr(GN, 2), n(1)))
        if DV == 2: p('v_fma_f32 v%d, v%d, s%d, v%d' % (Dn, Dn, sQ25, vEPS))
        else: p('v_add_f32 v%d, v%d, v%d' % (Dn, Dn, vEPS))
        p('v_cvt_pk_bf16_f32 v%d, 0, v%d' % (GN, GN))
        p('v_cvt_pk_bf16_f32 v%d, 0, v%d' % (GN + 1, GN + 1))
        p('v_cvt_pk_bf16_f32 v%d, 0, v%d' % (Dn, Dn))
        if DV == 2:
            p('v_mul_f32 v%d, s%d, v%d' % (GN, sQ25, GN))
            p('v_rcp_f32 v%d, v%d' % (Dn, Dn))
            p('v_mul_f32 v%d, s%d, v%d' % (GN + 1, sQ25, GN + 1))
            p('v_mul_f32 v%d, v%d, v%d' % (GN, GN, Dn))
            p('v_mul_f32 v%d, v%d, v%d' % (GN + 1, GN + 1, Dn))
        elif DV:
            p('v_mul_f32 v%d, 0.5, v%d' % (Dn, Dn))
            p('v_pk_mul_f32 %s, %s, 0.5 op_sel_hi:[1,0]' % (vr(GN, 2), vr(GN, 2)))
            p('v_mul_f32 v%d, 0.5, v%d' % (Dn, Dn))
            p('v_pk_mul_f32 %s, %s, 0.5 op_sel_hi:[1,0]' % (vr(GN, 2), vr(GN, 2)))
            p('v_rcp_f32 v%d, v%d' % (Dn, Dn))
            p('v_pk_mul_f32 %s, %s, %s op_sel_hi:[1,0]' % (vr(GN, 2), vr(GN, 2), vr(Dn, 2)))
        else: division2(p, GN, GN + 1, Dn, TT)
        p('v_cvt_pk_bf16_f32 v%d, v%d, v%d' % (GN, GN, GN + 1))
        p('buffer_store_dword v%d, v%d, s[32:35], 0 offen' % (GN, vWA if ORD else vK))
    p('s_mov_b64 exec, 1')
    p('global_store_dword v%d, v%d, s[10:11]' % (D2, GA + fT))
    p('s_mov_b64 exec, -1')
    if STAMP:
        if TS: stamp(5)
        p('L_stamps:')
        p('s_waitcnt vmcnt(0)')
        stamp(6)
        p('s_getreg_b32 s%d, hwreg(HW_REG_XCC_ID)' % (sST + 14))
        p('s_getreg_b32 s%d, hwreg(HW_REG_HW_ID)' % (sST + 15))
        p('s_lshl_b32 s36, s2, 6')
        p('s_add_u32 s36, s36, 0x8000000')
        srd(p, 20, 16, 36, 64)
        for i in range(16): p('v_mov_b32 v%d, s%d' % (KB + 48 + i, sST + i))
        for i in range(4): p('buffer_store_dwordx4 %s, v%d, s[20:23], 0 offen offset:%d' % (vr(KB + 48 + 4 * i, 4), D2, 16 * i))
    p('L_end:')
    p('s_endpgm')
    if LH:
        p('L_lh:')
        p('s_waitcnt lgkmcnt(0)')
        p('s_bitcmp1_b32 s2, 0')
        p('s_cbranch_scc1 L_recv')
        p('s_add_u32 s37, s39, 256')
        srd(p, R3K, 8, 37, 256)
        for kk in range(4): p('buffer_load_dwordx4 %s, v%d, %s, 0 offen offset:%d' % (vr(PH + 4 * kk, 4), vG, sr(R3K, 4), 64 * kk))
        p('s_xor_b32 s37, s36, 0x%x' % ((1 << 21) | (1 << pos[5]) | (1 << pos[6]) | (1 << pos[7])))
        srd(p, 20, 4, 37, KSZ)
        loadKblk(3, KB, 20)
        srd(p, 24, 6, 37, KSZ)
        loadVblk(3, KB + 32, 24)
        xaddr(8192)
        p('s_add_u32 s%d, s%d, 0x%08x' % (sE2, sE2, TAGK))
        p('s_waitcnt vmcnt(16)')
        phi_q(p, PH, OM, T, SQ, PQ, S0, vONE, vEPS)
        p('s_waitcnt vmcnt(8)')
        k_block(KB, PH)
        den_fold(1, GX + 2, vDA)
        v_block(KB + 32, PH, True, 0, False)
        num_fold(KB)
        p('v_mov_b32 v%d, s%d' % (GX + 3, sE2))
        p('v_mov_b32 v%d, v%d' % (GX, KB))
        p('v_mov_b32 v%d, v%d' % (GX + 1, KB + 1))
        p('buffer_store_dwordx4 %s, v%d, %s, 0 offen sc1' % (vr(GX, 4), vL16, sr(RX, 4)))
        p('s_branch L_lhdone')
        p('L_recv:')
        if not XP: xaddr(0)
        p('s_mov_b32 s38, 0x40000')
        if XP: p('s_branch L_xchk')
        p('L_xpoll:')
        p('buffer_load_dwordx4 %s, v%d, %s, 0 offen sc1' % (vr(GX, 4), vL16, sr(RX, 4)))
        p('s_waitcnt vmcnt(0)')
        p('L_xchk:')
        p('v_cmp_ne_u32 vcc, s%d, v%d' % (sE, GX + 3))
        p('s_cbranch_vccz L_xok')
        p('s_sub_u32 s38, s38, 1')
        p('s_cbranch_scc0 L_xpoll')
        p('L_xok:')
        p('v_pk_add_f32 %s, %s, %s' % (vr(KB, 2), vr(KB, 2), vr(GX, 2)))
        p('v_add_f32 v%d, v%d, v%d' % (vT0, vT0, GX + 2))
        p('ds_write_b64 v%d, %s' % (vWA, vr(KB, 2)))
        p('s_mov_b64 exec, 1')
        p('ds_write_b32 v%d, v%d' % (vDA, vT0))
        p('s_mov_b64 exec, -1')
        p('s_branch L_lhdone')
    return p, (L_Q + 4096 if opt.get('ls', 0) else L_Q + 2048 if OLDS else 4160)

def build(opt):
    m, lds = main_kernel(opt)
    s = HDR
    if 'diag' in opt:
        s += '; @launch kernel=%s grid=(256,1,1) block=(512,1,1) lds=%d\n' % (NAME, lds)
        s += '; @launch kernel=rfa_diag_kernel grid=(1,1,1) block=(256,1,1) lds=64\n'
    else:
        s += '; @launch grid=(256,1,1) block=(512,1,1) lds=%d\n' % lds
    s += '.amdgcn_target "amdgcn-amd-amdhsa--gfx950"\n.text\n'
    s += '.globl %s\n.p2align 8\n.type %s,@function\n%s:\n' % (NAME, NAME, NAME)
    s += m.finalize() + '\n'
    sys.stderr.write('%s: %d instr, %d nop states\n' % (NAME, len(m.out), m.nops))
    if 'diag' in opt:
        n = 'rfa_diag_kernel'
        s += '.globl %s\n.p2align 8\n.type %s,@function\n%s:\n' % (n, n, n) + diag_kernel(opt).finalize() + '\n'
    s += '.section .rodata,"a"\n.p2align 6\n' + kd(NAME, 256, 102)
    if 'diag' in opt: s += '.p2align 6\n' + kd('rfa_diag_kernel', 16)
    return s

if __name__ == '__main__':
    opt = {k: (v if k in ('p10', 'po') else int(v)) for k, v in (kv.split('=') for kv in sys.argv[2:])}
    open(sys.argv[1], 'w').write(build(opt))
```
